```python
import torch

def _softmax(x, axis=-1):
    return torch.softmax(x, dim=axis)

def _gelu(x):
    return torch.nn.functional.gelu(x, approximate='tanh')

def _silu(x):
    return torch.nn.functional.silu(x)

def _sigmoid(x):
    return torch.sigmoid(x)

def _layernorm(x, axis=-1, eps=1e-05):
    m = x.mean(dim=axis, keepdim=True)
    v = x.var(dim=axis, keepdim=True, unbiased=False)
    return (x - m) / torch.sqrt(v + eps)

def _scatter_add(tgt, idx, src, axis=0):
    return tgt.clone().index_add_(axis, idx, src)

def _segment_sum(src, seg, n):
    out = torch.zeros((n,) + src.shape[1:], dtype=src.dtype)
    return out.index_add_(0, seg, src)

def _pad(x, pw):
    flat = tuple((v for pair in reversed(pw) for v in pair))
    return torch.nn.functional.pad(x, flat)
kernel_name = 'adaLN_cond__gqa_block_cached__mixer_s_mlp__prompt'

def setup_inputs():

    _w = lambda a: (lambda t: t.to(torch.bfloat16) if t.is_floating_point() else t)(torch.as_tensor(a))

    def _A_setup():
        B, Sq, D = (1, 2048, 512)
        Hq, Hkv, Sk, Dh = (32, 8, 2048, 128)
        assert Hq % Hkv == 0, (Hq, Hkv)
        return {'x': _w((lambda *s: torch.randn(*s, dtype=torch.bfloat16) * 0.1)(B, Sq, D)), 'k_cache': _w((lambda *s: torch.randn(*s, dtype=torch.bfloat16) * 0.8)(B, Hkv, Sk, Dh)), 'v_cache': _w((lambda *s: torch.randn(*s, dtype=torch.bfloat16) * 0.8)(B, Hkv, Sk, Dh)), 'wq': _w((lambda *s: torch.randn(*s, dtype=torch.bfloat16) * 0.8)(D, Hq * Dh) * D ** (-0.5)), 'wo': _w((lambda *s: torch.randn(*s, dtype=torch.bfloat16) * 0.8)(Hq * Dh, D) * (Hq * Dh) ** (-0.5))}
    _A_in = _A_setup()

    def _B_setup():
        B, S, D, F = (1, 2048, 512, 1792)
        return {'x': _w((lambda *s: torch.randn(*s, dtype=torch.bfloat16) * 0.1)(B, S, D)), 'w1': _w((lambda *s: torch.randn(*s, dtype=torch.bfloat16) * 3.2)(D, D) * D ** (-0.5)), 'w2': _w((lambda *s: torch.randn(*s, dtype=torch.bfloat16) * 3.2)(D, D) * D ** (-0.5)), 'w3': _w((lambda *s: torch.randn(*s, dtype=torch.bfloat16) * 3.2)(D, F) * D ** (-0.5)), 'w4': _w((lambda *s: torch.randn(*s, dtype=torch.bfloat16) * 3.2)(F, D) * F ** (-0.5))}
    _B_in = _B_setup()
    return {'A_x': _A_in['x'], 'A_k_cache': _A_in['k_cache'], 'A_v_cache': _A_in['v_cache'], 'A_wq': _A_in['wq'], 'A_wo': _A_in['wo'], 'B_x': _B_in['x'], 'B_w1': _B_in['w1'], 'B_w2': _B_in['w2'], 'B_w3': _B_in['w3'], 'B_w4': _B_in['w4'], 'c': _w((lambda *s: torch.randn(*s, dtype=torch.bfloat16) * 0.2)(1, 512) * 8.0), 'w_mod': _w((lambda *s: torch.randn(*s, dtype=torch.bfloat16) * 0.2)(512, 6 * 512) * 512 ** (-0.5) * 8.0)}

def reference(A_x, A_k_cache, A_v_cache, A_wq, A_wo, B_x, B_w1, B_w2, B_w3, B_w4, c, w_mod):

    def _A_ref(x, k_cache, v_cache, wq, wo):
        B, Sq, D = x.shape
        Hq, Dh = (32, 128)
        Hkv = k_cache.shape[1]
        rep = Hq // Hkv
        q = (lambda x, *d: x.permute(*d))((x @ wq).reshape(B, Sq, Hq, Dh), 0, 2, 1, 3)
        k = (lambda x, n, axis: torch.repeat_interleave(x, n, dim=axis))(k_cache, rep, axis=1)
        v = (lambda x, n, axis: torch.repeat_interleave(x, n, dim=axis))(v_cache, rep, axis=1)
        scores = torch.einsum('bhqd,bhkd->bhqk', q, k) * Dh ** (-0.5)
        p = _softmax(scores, axis=-1)
        o = torch.einsum('bhqk,bhkd->bhqd', p, v)
        return (lambda x, *d: x.permute(*d))(o, 0, 2, 1, 3).reshape(B, Sq, Hq * Dh) @ wo

    def _B_ref(x, w1, w2, w3, w4):
        B, S, D = x.shape
        h = _gelu(_layernorm(x, axis=-1) @ w1)
        c = D // 4
        g0 = _pad(h[:, :, 0 * c:1 * c], ((0, 0), (1, 0), (0, 0)))[:, :S, :]
        g1 = _pad(h[:, :, 1 * c:2 * c], ((0, 0), (0, 1), (0, 0)))[:, 1:, :]
        g2 = _pad(h[:, :, 2 * c:3 * c], ((0, 0), (2, 0), (0, 0)))[:, :S, :]
        g3 = _pad(h[:, :, 3 * c:], ((0, 0), (0, 2), (0, 0)))[:, 2:, :]
        hs = torch.concatenate([g0, g1, g2, g3], axis=-1) @ w2
        x1 = x + hs
        h2 = _gelu(_layernorm(x1, axis=-1) @ w3) @ w4
        return x1 + h2
    x = A_x
    mod = (_silu(c) @ w_mod).reshape(c.shape[0], 6, 1, -1)
    sa, ca, ga, sb, cb, gb = (mod[:, 0].clone(), mod[:, 1].clone(), mod[:, 2].clone(), mod[:, 3].clone(), mod[:, 4].clone(), mod[:, 5].clone())
    h = _layernorm(x, axis=-1) * (1 + ca) + sa
    x = x + ga * _A_ref(h, A_k_cache, A_v_cache, A_wq, A_wo)
    h = _layernorm(x, axis=-1) * (1 + cb) + sb
    x = x + gb * _B_ref(h, B_w1, B_w2, B_w3, B_w4)
    return x
```

```python
NAME = "adaLN_cond__gqa_block_cached__mixer_s_mlp__prompt"

HEADER = """; Kernarg layout for this problem (120 bytes, ptrs only, base s[0:1]):
"""

ARG = dict(x=0, k=8, v=16, wq=24, wo=32, w1=48, w2=56, w3=64, w4=72, c=80, wmod=88,
           out=96, dbg=104, ws=112)


def v(i, n=1):
    return f"v{i}" if n == 1 else f"v[{i}:{i + n - 1}]"


def a(i, n=1):
    return f"a{i}" if n == 1 else f"a[{i}:{i + n - 1}]"


def s(i, n=1):
    return f"s{i}" if n == 1 else f"s[{i}:{i + n - 1}]"


class Kernel:
    def __init__(self, label, grid, block=256, lds=0, vgprs=256, agprs=0, sgprs=102):
        assert label.endswith("_kernel")
        self.label, self.grid, self.block, self.lds = label, grid, block, lds
        self.vgprs, self.agprs, self.sgprs = vgprs, agprs, sgprs
        self.lines = []
        self.nlab = 0

    def __call__(self, text):
        for ln in text.strip("\n").split("\n"):
            ln = ln.strip()
            if ln:
                self.lines.append(ln if ln.endswith(":") else "    " + ln)

    def newlabel(self, stem):
        self.nlab += 1
        return f"L_{self.label[:-7]}_{stem}_{self.nlab}"

    def srd(self, d, base, nbytes):
        self(f"""
        s_mov_b32 s{d}, s{base}
        s_mov_b32 s{d + 1}, s{base + 1}
        s_mov_b32 s{d + 2}, {hex(nbytes)}
        s_mov_b32 s{d + 3}, 0x20000
        """)

    def srd_off(self, d, base, off, nbytes):
        self(f"""
        s_add_u32 s{d}, s{base}, {hex(off)}
        s_addc_u32 s{d + 1}, s{base + 1}, 0
        s_mov_b32 s{d + 2}, {hex(nbytes)}
        s_mov_b32 s{d + 3}, 0x20000
        """)

    def text(self, verbose=True):
        import hazard
        rep = []
        hazard.pad.dirty = True
        lines, n = hazard.pad(self.lines, rep)
        errs = []
        for tk in [()] + [(t,) for t in getattr(self, "alt", [])]:
            errs += hazard.check_waits(lines, tk)
        if verbose:
            print(f"{self.label}: {len(lines)} lines, {n} pad states at {len(rep)} places, {len(errs)} wait errors")
            for r in rep[:getattr(self, "show_pads", 0)]:
                print("   pad", r)
            for e in errs[:12]:
                print("   WAIT", e)
        out = [f".globl {self.label}", ".p2align 8", f".type {self.label},@function",
               f"{self.label}:"]
        out += lines
        return "\n".join(out) + "\n"

    def desc(self):
        acc = (self.vgprs + 3) // 4 * 4
        nfv = acc + self.agprs if self.agprs else self.vgprs
        return f""".p2align 6
.amdhsa_kernel {self.label}
  .amdhsa_next_free_vgpr {nfv}
  .amdhsa_next_free_sgpr {self.sgprs}
  .amdhsa_accum_offset {acc}
  .amdhsa_group_segment_fixed_size 0
  .amdhsa_kernarg_size 120
  .amdhsa_user_sgpr_count 2
  .amdhsa_user_sgpr_kernarg_segment_ptr 1
  .amdhsa_system_sgpr_workgroup_id_x 1
.end_amdhsa_kernel
"""


def build(launches):
    out = HEADER
    for k in launches:
        out += (f"; @launch kernel={k.label} grid=({k.grid},1,1) block=({k.block},1,1) "
                f"lds={k.lds}\n")
    out += '.amdgcn_target "amdgcn-amd-amdhsa--gfx950"\n.text\n'
    seen = []
    for k in launches:
        if k not in seen:
            seen.append(k)
    for k in seen:
        out += k.text()
    out += '.section .rodata,"a"\n'
    for k in seen:
        out += k.desc()
    return out
```

```python
from asmlib import *

MB = 1 << 20
WS_MOD = 0
WS_CSUM = 0x4000
WS_STAT = 0x8000
WS_XH = 1 * MB
WS_P = 4 * MB
WS_X1 = 20 * MB
WS_H2 = 22 * MB
WS_U = 24 * MB
WS_T = 26 * MB
WS_Y = 28 * MB
WS_G = 30 * MB
WS_END = 38 * MB

LOG2E = 1.4426950408889634
QSCALE = 128 ** -0.5 * LOG2E


def fbits(x):
    import struct
    return hex(struct.unpack("<I", struct.pack("<f", x))[0])


def load_args(k, m):
    for n, r in m.items():
        k(f"s_load_dwordx2 s[{r}:{r + 1}], s[0:1], {ARG[n]}")


def unpack(k, dst, src, n):
    for i in range(n):
        k(f"v_lshlrev_b32 v{dst + 2 * i}, 16, v{src + i}")
        k(f"v_and_b32 v{dst + 2 * i + 1}, 0xffff0000, v{src + i}")


def xsum_rows(k, rs, tmp):
    for swap in ("v_permlane32_swap_b32", "v_permlane16_swap_b32"):
        for i, r in enumerate(rs):
            k(f"v_mov_b32 v{tmp + i}, v{r}")
        for i, r in enumerate(rs):
            k(f"{swap} v{r}, v{tmp + i}")
        for i, r in enumerate(rs):
            k(f"v_add_f32 v{r}, v{r}, v{tmp + i}")


def dpp_add(k, rs, ctrl):
    for r in rs:
        k(f"v_add_f32_dpp v{r}, v{r}, v{r} {ctrl} row_mask:0xf bank_mask:0xf")
```

```python
import re

TRANS = ("v_exp_", "v_log_", "v_rcp_", "v_rsq_", "v_sqrt_", "v_sin_", "v_cos_")
DPP = ("quad_perm", "row_shr", "row_shl", "row_ror", "row_mirror", "row_half_mirror", "row_bcast", "wave_",
       "row_newbcast")
REG = re.compile(r"^(-|\|)?([vas])(\d+|\[(\d+):(\d+)\])\|?$")


def regs(tok):
    tok = tok.strip()
    if tok in ("vcc", "exec"):
        return {(tok, 0), (tok, 1)}
    if tok in ("vcc_lo", "exec_lo"):
        return {(tok[:-3], 0)}
    if tok in ("vcc_hi", "exec_hi"):
        return {(tok[:-3], 1)}
    if tok == "m0":
        return {("m0", 0)}
    m = REG.match(tok)
    if not m:
        return set()
    if m.group(4):
        return {(m.group(2), i) for i in range(int(m.group(4)), int(m.group(5)) + 1)}
    return {(m.group(2), int(m.group(3)))}


class Ins:
    def __init__(self, text):
        self.text = text
        t = text.split(";")[0].strip()
        self.label = t[:-1] if t.endswith(":") else None
        self.op = "" if self.label else t.split()[0]
        rest = t[len(self.op):].strip() if not self.label else ""
        parts = [p.strip() for p in rest.split(",")] if rest else []
        self.mods = ""
        if parts:
            last = parts[-1].split()
            parts[-1] = last[0] if last else ""
            self.mods = " ".join(last[1:])
        self.ops = parts
        op = self.op
        self.mfma = op.startswith("v_mfma")
        self.valu = op.startswith("v_") and not self.mfma
        self.salu = op.startswith("s_") and not op.startswith(("s_load", "s_waitcnt", "s_nop", "s_barrier",
                                                                "s_branch", "s_cbranch", "s_endpgm", "s_memtime",
                                                                "s_memrealtime", "s_atomic", "s_sleep",
                                                                "s_setprio", "s_buffer_load"))
        self.smem = op.startswith(("s_load", "s_memtime", "s_memrealtime", "s_atomic", "s_buffer_load"))
        self.ds = op.startswith("ds_")
        self.vmem = op.startswith(("buffer_", "global_"))
        self.trans = op.startswith(TRANS)
        self.dpp = any(d in self.mods for d in DPP)
        self.dma = self.vmem and ("lds" in self.mods.split() or "_lds_" in op)
        self.R, self.W = set(), set()
        o = [regs(p) for p in parts]
        self.o = o
        U = lambda xs: set().union(*xs) if xs else set()
        if self.mfma:
            self.W = o[0]
            self.R = U(o[1:])
            self.passes = 8 if "32x32" in op else 4
        elif self.valu:
            if op.startswith("v_nop"):
                pass
            elif "permlane" in op and "swap" in op:
                self.W = self.R = U(o)
            elif op.startswith(("v_add_co", "v_sub_co", "v_addc_co", "v_subb_co", "v_subrev_co")):
                self.W, self.R = U(o[:2]), U(o[2:])
            else:
                self.W, self.R = o[0], U(o[1:])
                if op.startswith(("v_fmac", "v_mac", "v_pk_fmac", "v_dot2c", "v_writelane")) or self.dpp:
                    self.R |= o[0]
                if op.startswith("v_cndmask") and len(o) == 3:
                    self.R |= regs("vcc")
                if op.startswith("v_cmpx"):
                    self.W |= regs("exec")
        elif self.ds:
            if op.startswith(("ds_read", "ds_bpermute", "ds_permute", "ds_swizzle")):
                self.W, self.R = o[0], U(o[1:])
            elif "_rtn" in op:
                self.W, self.R = o[0], U(o[1:])
            else:
                self.R = U(o)
        elif self.vmem:
            if op.startswith(("buffer_wbl2", "buffer_inv")):
                pass
            elif self.dma:
                self.R = U(o) | regs("m0")
            elif "load" in op:
                self.W, self.R = o[0], U(o[1:])
            else:
                self.R = U(o)
                if "atomic" in op and "sc0" in self.mods.split():
                    self.W = o[0]
        elif self.smem:
            self.W, self.R = (o[0] if o else set()), U(o[1:])
        elif self.salu:
            if op.startswith(("s_cmp", "s_bitcmp")):
                self.R = U(o)
            else:
                self.W, self.R = (o[0] if o else set()), U(o[1:])
                if "saveexec" in op:
                    self.W |= regs("exec")
        self.states = 0 if self.label else (int(parts[0]) + 1 if op == "s_nop" else 1)
        self.wide_store = self.vmem and "store" in op and op.endswith(("x3", "x4"))


def isv(rs):
    return {r for r in rs if r[0] in "va"}


def iss(rs):
    return {r for r in rs if r[0] in ("s", "vcc")}


def need(p, c):
    n = 0
    if p.valu:
        wv, ws = isv(p.W), iss(p.W)
        if c.mfma and wv & c.R:
            n = max(n, 2)
        if c.valu and (c.dpp or "permlane" in c.op) and wv & c.R:
            n = max(n, 2)
        if c.op.startswith(("v_readlane", "v_readfirstlane")) and wv & c.R:
            n = max(n, 1)
        if p.trans and c.valu and not c.trans and wv & c.R:
            n = max(n, 1)
        if p.trans and (c.mfma or c.ds or c.vmem) and wv & c.R:
            n = max(n, 2 if c.mfma else 1)
        if ws & c.R:
            if c.valu:
                n = max(n, 4 if c.op.startswith(("v_readlane", "v_writelane", "v_div_fmas")) else 2)
            if c.vmem:
                n = max(n, 5)
        if ("exec", 0) in p.W:
            if c.dpp:
                n = max(n, 5)
            if c.mfma or "permlane" in c.op or c.op.startswith(("v_readlane", "v_readfirstlane", "v_writelane")):
                n = max(n, 4)
        if ("op_sel" in p.mods or "sdwa" in p.op or "dst_sel" in p.mods) and c.valu and wv & (c.R | c.W):
            n = max(n, 1)
    if p.mfma:
        big = p.passes == 8
        if c.mfma:
            if p.W & (c.o[1] | c.o[2]):
                n = max(n, 12 if big else 8)
            if p.W & c.o[3] and not (p.W == c.o[3] and p.passes == c.passes):
                n = max(n, 10 if big else 6)
            if p.W & c.W and not (p.W & c.o[3]):
                n = max(n, 10 if big else 6)
        elif (c.valu or c.ds or c.vmem) and p.W & (c.R | c.W):
            n = max(n, 12 if big else 8)
        if c.valu and p.o[3] & c.W:
            n = max(n, 7 if big else 3)
    if p.salu and ("m0", 0) in p.W and c.dma:
        n = max(n, 1)
    if p.wide_store and p.o[0] & c.W and (c.valu or c.ds or c.vmem):
        n = max(n, 2 if c.valu else 1)
    return n


MAXD = 12


def pad(lines, report=None):
    ins = [Ins(l) for l in lines]
    total = 0
    i = 0
    while i < len(ins):
        c = ins[i]
        if c.label or c.op in ("s_nop",):
            i += 1
            continue
        lab = {x.label: j for j, x in enumerate(ins) if x.label} if i == 0 or pad.dirty else pad.lab
        if i == 0 or pad.dirty:
            pad.lab = lab
            pad.src = {}
            for j, x in enumerate(ins):
                if x.op.startswith(("s_branch", "s_cbranch")):
                    pad.src.setdefault(lab[x.ops[0]], []).append(j)
            pad.dirty = False
        short, why = 0, None
        stack = [(i, 0)]
        seen = set()
        while stack:
            j, d = stack.pop()
            preds = []
            if j > 0 and ins[j - 1].op not in ("s_branch", "s_endpgm"):
                preds.append(j - 1)
            if ins[j].label:
                preds += pad.src.get(j, [])
            for q in preds:
                if (q, d) in seen:
                    continue
                seen.add((q, d))
                p = ins[q]
                if not p.label:
                    n = need(p, c)
                    if n - d > short:
                        short, why = n - d, p.text.strip()
                if d + p.states < MAXD:
                    stack.append((q, d + p.states))
        if short > 0:
            ins.insert(i, Ins(f"    s_nop {short - 1}"))
            pad.dirty = True
            total += short
            if report is not None:
                report.append((i, short, why, c.text.strip()))
            i += 1
        i += 1
    return [x.text for x in ins], total


pad.dirty = True


def trace(ins, taken=()):
    lab = {x.label: j for j, x in enumerate(ins) if x.label}
    done = set()
    j = 0
    while j < len(ins):
        x = ins[j]
        yield j
        if x.op == "s_endpgm":
            return
        if x.op.startswith(("s_branch", "s_cbranch")):
            t = lab[x.ops[0]]
            if x.op == "s_branch":
                if t <= j and j in done:
                    return
                done.add(j)
                j = t
                continue
            if t <= j and j not in done:
                done.add(j)
                j = t
                continue
            if t > j and x.ops[0] in taken and j not in done:
                done.add(j)
                j = t
                continue
        j += 1


def check_waits(lines, taken=()):
    ins = [Ins(l) for l in lines]
    vm, lg = [], []
    errs = []
    for j in trace(ins, taken):
        x = ins[j]
        if x.label:
            continue
        if x.op == "s_waitcnt":
            t = x.text
            m = re.search(r"vmcnt\((\d+)\)", t)
            if m:
                n = int(m.group(1))
                vm = vm[len(vm) - n:] if n < len(vm) else vm
                if n == 0:
                    vm = []
            m = re.search(r"lgkmcnt\((\d+)\)", t)
            if m:
                n = int(m.group(1))
                if n == 0:
                    lg = []
                elif not any(e[1] for e in lg):
                    lg = lg[len(lg) - n:] if n < len(lg) else lg
            continue
        use = x.R | x.W
        for q, name in ((vm, "vmcnt"), (lg, "lgkmcnt")):
            for e in q:
                same_queue = (name == "vmcnt" and x.vmem) or (name == "lgkmcnt" and x.ds and not e[1])
                hit = e[0] & (x.R if same_queue else use)
                if hit:
                    errs.append((j, name, e[2], x.text.strip()))
        if x.vmem and not x.op.startswith(("buffer_inv",)):
            vm.append((x.W, False, x.text.strip()))
            if len(vm) > 63:
                errs.append((j, "vmcnt overflow", "", x.text.strip()))
        elif x.ds:
            lg.append((x.W, False, x.text.strip()))
        elif x.smem:
            lg.append((x.W, True, x.text.strip()))
    return errs
```

```python
from common import *


def k1():
    k = Kernel("k1_kernel", 280, vgprs=96, lds=2048)
    END, LN, CS, GO = (k.newlabel(x) for x in ("end", "ln", "cs", "go"))
    k.alt = [LN, CS]
    k(f"s_cmp_ge_u32 s2, 280\ns_cbranch_scc1 {END}")
    load_args(k, dict(x=4, wmod=6, w3=8, c=10, ws=12))
    k(f"""
    v_and_b32 v1, 63, v0
    v_lshrrev_b32 v2, 6, v0
    s_cmp_lt_u32 s2, 128
    v_readfirstlane_b32 s14, v2
    s_waitcnt lgkmcnt(0)
    s_cbranch_scc1 {LN}
    s_cmp_ge_u32 s2, 224
    s_cbranch_scc1 {CS}
    """)
    k.srd(16, 6, 512 * 3072 * 2)
    k(f"""
    s_sub_u32 s15, s2, 128
    s_mov_b32 s24, 6144
    s_lshl_b32 s25, s15, 7
    s_branch {GO}
    {CS}:
    """)
    k.srd(16, 8, 512 * 1792 * 2)
    k(f"""
    s_sub_u32 s15, s2, 224
    s_mov_b32 s24, 3584
    s_lshl_b32 s25, s15, 7
    s_add_u32 s25, s25, {WS_CSUM}
    {GO}:
    """)
    k.srd(20, 10, 1024)
    k.srd(28, 12, 0x8000)
    k(f"""
    v_lshrrev_b32 v3, 2, v0
    v_lshlrev_b32 v4, 4, v3
    buffer_load_dwordx4 v[8:11], v4, s[20:23], 0 offen
    s_lshl_b32 s26, s24, 3
    v_mul_lo_u32 v3, v3, s26
    v_and_b32 v4, 3, v0
    v_lshl_add_u32 v3, v4, 4, v3
    s_lshl_b32 s26, s15, 6
    """)
    for i in range(8):
        k(f"buffer_load_dwordx4 v[{32 + 4 * i}:{35 + 4 * i}], v3, s[16:19], s26 offen")
        if i < 7:
            k("s_add_u32 s26, s26, s24")
    k("s_waitcnt vmcnt(8)")
    unpack(k, 12, 8, 4)
    for i in range(8):
        k(f"v_mul_f32 v{20 + i}, {fbits(-LOG2E)}, v{12 + i}")
    for i in range(8):
        k(f"v_exp_f32 v{20 + i}, v{20 + i}")
    for i in range(8):
        k(f"v_add_f32 v{20 + i}, 1.0, v{20 + i}")
    for i in range(8):
        k(f"v_rcp_f32 v{20 + i}, v{20 + i}")
    for i in range(8):
        k(f"v_mul_f32 v{20 + i}, v{12 + i}, v{20 + i}")
    for i in range(4):
        k(f"v_cvt_pk_bf16_f32 v{8 + i}, v{20 + 2 * i}, v{21 + 2 * i}")
    unpack(k, 12, 8, 4)
    k("s_cmp_ge_u32 s2, 224\ns_cselect_b64 vcc, -1, 0")
    for i in range(8):
        k(f"v_cndmask_b32 v{12 + i}, v{12 + i}, 1.0, vcc")
    for e in range(8):
        k(f"v_mov_b32 v{20 + e}, 0")
    for i in range(8):
        k(f"s_waitcnt vmcnt({7 - i})")
        unpack(k, 64, 32 + 4 * i, 4)
        for e in range(8):
            k(f"v_fmac_f32 v{20 + e}, v{12 + i}, v{64 + e}")
    acc = list(range(20, 28))
    dpp_add(k, acc, "row_ror:4")
    dpp_add(k, acc, "row_ror:8")
    k(f"""
    v_lshrrev_b32 v3, 4, v0
    v_lshlrev_b32 v3, 7, v3
    v_lshl_add_u32 v3, v4, 5, v3
    v_and_b32 v5, 12, v0
    v_cmp_eq_u32 vcc, 0, v5
    s_and_saveexec_b64 s[32:33], vcc
    ds_write_b128 v3, v[20:23]
    ds_write_b128 v3, v[24:27] offset:16
    s_mov_b64 exec, s[32:33]
    s_waitcnt lgkmcnt(0)
    s_barrier
    s_cmp_lg_u32 s14, 0
    s_cbranch_scc1 {END}
    v_and_b32 v3, 31, v0
    v_lshlrev_b32 v3, 2, v3
    """)
    k("v_add_u32 v6, 1024, v3")
    for i in range(8):
        k(f"ds_read2_b32 v[{32 + 2 * i}:{33 + 2 * i}], v{3 if i < 4 else 6} "
          f"offset0:{64 * (i & 3)} offset1:{64 * (i & 3) + 32}")
    k("s_waitcnt lgkmcnt(0)")
    for n in (8, 4, 2, 1):
        for i in range(n):
            k(f"v_add_f32 v{32 + i}, v{32 + i}, v{32 + n + i}")
    k(f"""
    s_lshr_b32 s26, s15, 4
    s_cmp_eq_u32 s26, 1
    s_cselect_b32 s27, 1.0, 0
    s_cmp_eq_u32 s26, 4
    s_cselect_b32 s27, 1.0, s27
    s_cmp_lt_u32 s26, 2
    s_cselect_b32 s26, {fbits(QSCALE)}, 1.0
    v_cvt_pk_bf16_f32 v33, v32, v32
    v_lshlrev_b32 v33, 16, v33
    v_add_f32 v33, s27, v33
    v_cvt_pk_bf16_f32 v33, v33, v33
    v_lshlrev_b32 v33, 16, v33
    v_mul_f32 v33, s26, v33
    s_cmp_ge_u32 s2, 224
    s_cselect_b64 vcc, -1, 0
    v_cndmask_b32 v33, v33, v32, vcc
    v_cmp_gt_u32 vcc, 32, v0
    s_and_saveexec_b64 s[32:33], vcc
    buffer_store_dword v33, v3, s[28:31], s25 offen
    s_waitcnt vmcnt(0)
    s_endpgm
    {LN}:
    """)
    k.srd(16, 4, 2 * MB)
    k.srd_off(20, 12, WS_XH, 2 * MB)
    k(f"""
    v_lshrrev_b32 v3, 2, v1
    v_and_b32 v4, 3, v1
    v_lshlrev_b32 v5, 6, v3
    v_lshl_add_u32 v5, v4, 3, v5
    s_lshl_b32 s15, s2, 14
    s_lshl_b32 s24, s14, 12
    s_add_u32 s24, s24, s15
    """)
    for r in range(4):
        k(f"buffer_load_dwordx2 v[{8 + 4 * r}:{9 + 4 * r}], v5, s[16:19], s24 offen offset:{1024 * r}")
        k(f"buffer_load_dwordx2 v[{10 + 4 * r}:{11 + 4 * r}], v5, s[16:19], s24 offen offset:{1024 * r + 32}")
    k(f"""
    v_lshlrev_b32 v6, 10, v3
    v_lshl_add_u32 v6, v4, 8, v6
    s_lshl_b32 s24, s14, 6
    s_add_u32 s24, s24, s15
    """)
    X, SM, TM = 32, 64, 72
    for r in range(4):
        k(f"s_waitcnt vmcnt({6 - 2 * r})")
        unpack(k, X + 8 * r, 8 + 4 * r, 4)

    def rowsum(src):
        for r in range(4):
            k(f"v_add_f32 v{SM + r}, v{src + 8 * r}, v{src + 8 * r + 1}")
        for e in range(2, 8):
            for r in range(4):
                k(f"v_add_f32 v{SM + r}, v{SM + r}, v{src + 8 * r + e}")

    def allsum():
        rs = [SM + r for r in range(4)]
        dpp_add(k, rs, "quad_perm:[1,0,3,2]")
        dpp_add(k, rs, "quad_perm:[2,3,0,1]")
        dpp_add(k, rs, "row_ror:4")
        dpp_add(k, rs, "row_ror:8")
        xsum_rows(k, rs, TM)

    rowsum(X)
    allsum()
    for r in range(4):
        k(f"v_mul_f32 v{SM + r}, {fbits(1 / 512)}, v{SM + r}")
    for r in range(4):
        for e in range(8):
            k(f"v_sub_f32 v{X + 8 * r + e}, v{X + 8 * r + e}, v{SM + r}")
    for r in range(4):
        k(f"v_mul_f32 v{SM + r}, v{X + 8 * r}, v{X + 8 * r}")
    for e in range(1, 8):
        for r in range(4):
            k(f"v_fmac_f32 v{SM + r}, v{X + 8 * r + e}, v{X + 8 * r + e}")
    allsum()
    k(f"v_mov_b32 v7, {fbits(1e-5)}")
    for r in range(4):
        k(f"v_fmamk_f32 v{SM + r}, v{SM + r}, {fbits(1 / 512)}, v7")
    for r in range(4):
        k(f"v_rsq_f32 v{SM + r}, v{SM + r}")
    for r in range(4):
        for e in range(8):
            k(f"v_mul_f32 v{X + 8 * r + e}, v{X + 8 * r + e}, v{SM + r}")
        for i in range(4):
            k(f"v_cvt_pk_bf16_f32 v{8 + 4 * r + i}, v{X + 8 * r + 2 * i}, v{X + 8 * r + 2 * i + 1}")
        k(f"buffer_store_dwordx4 v[{8 + 4 * r}:{11 + 4 * r}], v6, s[20:23], s24 offen offset:{16 * r}")
    k(f"""
    s_waitcnt vmcnt(0)
    {END}:
    s_endpgm
    """)
    return k
```

```python
from common import *

MF = "v_mfma_f32_16x16x32_bf16"
REG = 40960
O, S, P, NEGM = 0, (128, 160), 192, 208
L = (224, 225, 228, 232)
KA, VA, KD, VD = 236, 240, 248, 249
LN16, LN16B, WD, WAB, TMP, JUNK = 250, 251, 252, 253, 254, 255
WA = 128
AQ, AK, AV, AONE, AW, AX, AFL = 0, 64, 96, 128, 132, 164, 196
SW, SK, SV, SWD, SIO, SMD = 3, 16, 20, 24, 28, 32
SREG, SKO, SVO, SSO, SCNT, SFLAG, SG, SQB = 36, 37, 38, 39, 40, 41, 42, 43
BUF = ({"v": (8, 4), "k": (7, 9)}, {"v": (0, 5), "k": (1, 2)})
PROF = False


class VM:
    def __init__(self):
        self.q = []

    def add(self, tag):
        self.q.append(tag)

    def wait(self, tag):
        idx = [i for i, t in enumerate(self.q) if t == tag]
        if not idx:
            return ""
        n = len(self.q) - 1 - idx[-1]
        self.q = self.q[idx[-1] + 1:]
        return f"s_waitcnt vmcnt({n})"


def stamp(k, i):
    if PROF:
        k(f"s_memrealtime s[{60 + 2 * i}:{61 + 2 * i}]\ns_waitcnt lgkmcnt(0)")


def w_piece(ks, n, pair, stride):
    m2, q = n >> 2, n & 3
    pre = []
    if q == 0:
        pre.append(f"s_add_u32 m0, s{SREG}, {16384 + 8192 * pair + 4096 * m2 - 128 * m2}")
    pre.append(f"s_mov_b32 s{SSO}, {ks * 32 * stride + q * (8 * stride - 1024)}")
    return pre, f"buffer_load_dwordx4 v{WD}, s[{SWD}:{SWD + 3}], s{SSO} offen offset:{1024 * q + 128 * m2} lds"


def kv_piece(kind, slot, p, adv):
    srd, vo, so = (SK, KD, SKO) if kind == "k" else (SV, VD, SVO)
    pre = [f"s_add_u32 m0, s{SREG}, {4096 * slot}"] if p == 0 else []
    post = [f"s_add_u32 s{so}, s{so}, 0x4000"] if p == 3 and adv else []
    return pre, f"buffer_load_dwordx4 v{vo}, s[{srd}:{srd + 3}], s{so} offen offset:{1024 * p} lds", post


def w_read(n, rd, pair):
    return (f"ds_read_b64_tr_b16 {a(AW + 4 * n + 2 * rd, 2)}, v{WA + (n & 3)} "
            f"offset:{16384 + 8192 * pair + 4096 * (n >> 2) + 2048 * rd}")


def x_read(ks, tb):
    r = ks >> 2
    return (f"ds_read_b128 {a(AX + 16 * (ks & 1) + 4 * tb, 4)}, v{LN16 if r < 2 else LN16B} "
            f"offset:{(r & 1) * REG + (ks & 3) * 4096 + tb * 1024}")


def gemm(k, vm, phase, stride, late):
    pair = lambda ks: (ks + phase) % 3
    for u in range(4):
        k(f"v_xor_b32 v{WA + u}, {32 * u}, v{WAB}")
    for tb in range(4):
        k(x_read(0, tb))
    k(vm.wait(("w", 0, 1)))
    for n in range(8):
        k(w_read(n, 0, pair(0)))
        k(w_read(n, 1, pair(0)))
    k("s_waitcnt lgkmcnt(8)")
    for ks in range(16):
        for n in range(8):
            pre, dma, post = [], None, []
            if ks + 3 < 16:
                pre, dma = w_piece(ks + 3, n, pair(ks), stride)
                tag = ("w", ks + 3, n >> 2)
            elif (n >> 2) < len(late.get(ks, [])):
                kind, slot = late[ks][n >> 2]
                assert slot == 4 + 2 * pair(ks) + (n >> 2)
                pre, dma, post = kv_piece(kind, slot, n & 3, True)
                tag = "kv"
            for tb in range(4):
                D = v(O + 16 * n + 4 * tb, 4)
                k(f"{MF} {D}, {a(AW + 4 * n, 4)}, {a(AX + 16 * (ks & 1) + 4 * tb, 4)}, {D if ks else 0}")
                if tb == 0 and n < 4 and ks < 15:
                    k(x_read(ks + 1, n))
                if tb == 1:
                    if n == 3:
                        k(f"s_waitcnt lgkmcnt({10 if ks < 15 else 0})")
                    if n == 7 and ks < 15:
                        k("s_waitcnt lgkmcnt(6)")
                    if n & 3 == 0 and ks < 15:
                        k(vm.wait(("w", ks + 1, n >> 2)))
                    for x in pre:
                        k(x)
                if tb == 2 and dma:
                    k(dma)
                    vm.add(tag)
                if tb == 3:
                    for x in post:
                        k(x)
                    if ks < 15:
                        k(w_read(n, 0, pair(ks + 1)))
                        k(w_read(n, 1, pair(ks + 1)))


def qk(sb, s_, kb, qb, c0):
    D = v(S[sb] + 8 * qb + 4 * kb, 4)
    return f"{MF} {D}, {a(AK + 8 * s_ + 4 * kb, 4)}, {a(AQ + 16 * qb + 4 * s_, 4)}, {D if s_ else c0}"


def k_read(n, off):
    return f"ds_read_b128 {a(AK + 4 * n, 4)}, v{KA + (n >> 1)} offset:{off + 1024 * (n & 1)}"


def exp(sb, e):
    return f"v_exp_f32 v{S[sb] + e}, v{S[sb] + e}"


def cvt(sb, e):
    return f"v_cvt_pk_bf16_f32 v{P + (e >> 1)}, v{S[sb] + e - 1}, v{S[sb] + e}"


EGAP = [0, 2, 5, 7, 9, 11, 14, 16] + list(range(18, 66, 2))
DGAP = [4, 8, 13, 17]
VGAP = [1, 6, 10, 15, 19, 21, 21, 23, 25, 25, 27, 29, 29, 31, 33, 35]
CGAP = [1, 6, 10, 15, 19, 23, 27, 31, 35, 39, 43, 47, 51, 55, 59, 63]
AGAP = [33, 37, 41, 45, 49, 53, 53, 55, 57, 57, 59, 61, 61, 63, 65, 65]
NHEAD = 9


def iteration(k, j, voff, koff, dmas, first=False, do_qk=True, barrier=False, drain=False, extra=()):
    cur, nxt = j & 1, (j + 1) & 1
    mf = [qk(nxt, s_, kb, qb, v(NEGM + 4 * qb, 4)) if do_qk else None
          for s_ in range(4) for kb in range(2) for qb in range(4)]
    for qp in range(2):
        for db in range(8):
            for q in range(2):
                D = v(O + 16 * db + 4 * (2 * qp + q), 4)
                mf.append(f"{MF} {D}, {a(AV + 4 * db, 4)}, {v(P + 4 * (2 * qp + q), 4)}, {0 if first else D}")
    for pos, qb in ((52, 2), (59, 3)):
        D = v(L[qb], 4)
        mf.insert(pos, f"{MF} {D}, {a(AONE, 4)}, {v(P + 4 * qb, 4)}, {0 if first else D}")
    sc = [[] for _ in range(66)]
    ds = [[] for _ in range(66)]
    va = [[] for _ in range(66)]
    if barrier:
        sc[0].append("s_barrier")
    for i, g in enumerate(EGAP):
        e = i + NHEAD
        if e < 32:
            va[g].append(exp(cur, e))
        elif do_qk:
            va[g].append(exp(nxt, e - 32))
    for i, g in enumerate(CGAP):
        e = 2 * i + NHEAD
        if e < 32:
            va[g].append(cvt(cur, e))
        elif do_qk:
            va[g].append(cvt(nxt, e - 32))
    for i, g in enumerate(AGAP):
        qb = i & 1
        va[g].append(f"v_add_f32 v{L[qb]}, v{L[qb]}, v{S[cur] + 8 * qb + (i >> 1)}")
    for i, g in enumerate(VGAP):
        ds[g].append(f"ds_read_b64_tr_b16 {a(AV + 2 * i, 2)}, v{VA + (i >> 1)} offset:{voff + 1024 * (i & 1)}")
    nk = 8 if koff is not None else 0
    for n in range(nk):
        ds[37 + 2 * n].append(k_read(n, koff))
    sc[30].append("s_waitcnt lgkmcnt(5)")
    sc[38].append(f"s_waitcnt lgkmcnt({3 if nk else 2})")
    sc[44].append(f"s_waitcnt lgkmcnt({4 if nk else 0})")
    sc[62].append("s_waitcnt lgkmcnt(0)")
    if drain:
        sc[64].append("s_waitcnt vmcnt(0)")
    for g, (pre, dma, post) in zip(DGAP, dmas):
        sc[g - 1] += pre[-1:]
        sc[g - 2] += pre[:-1]
        ds[g].append(dma)
        sc[g + 1] += post
    for g, x in extra:
        sc[g].append(x)
    for g in range(66):
        for x in ([mf[g]] if mf[g] else []) + sc[g] + ds[g] + va[g]:
            k(x)


def stage(k, par, kind, extra=()):
    cur, oth = BUF[par], BUF[1 - par]
    for i in range(4):
        voff = 4096 * cur["v"][i >> 1] + 2048 * (i & 1)
        koff = 4096 * cur["k"][i >> 1] + 2048 * (i & 1)
        if kind == "last":
            dm = []
            for p in range(4):
                pre, dma = w_piece(i >> 1, 4 * (i & 1) + p, 1 + (i >> 1), 1024)
                dm.append((pre, dma, []))
            iteration(k, i, voff, koff if i < 2 else None, dm, do_qk=i < 3, barrier=i in (0, 2))
        else:
            t = "vk"[i & 1]
            dm = [kv_piece(t, oth[t][i >> 1], p, True) for p in range(4)]
            iteration(k, i, voff, koff, dm, first=kind == "first" and i == 0, barrier=i == 0 and kind != "first",
                      drain=i == 3, extra=extra if i == 3 else ())


def xmax_rows(k, rs, tmp):
    for swap in ("v_permlane32_swap_b32", "v_permlane16_swap_b32"):
        for i, r in enumerate(rs):
            k(f"v_mov_b32 v{tmp + i}, v{r}")
        for i, r in enumerate(rs):
            k(f"{swap} v{r}, v{tmp + i}")
        for i, r in enumerate(rs):
            k(f"v_max_f32 v{r}, v{r}, v{tmp + i}")


def lane_max(k, dst, init):
    for qb in range(4):
        k(f"v_max3_f32 v{dst + qb}, v{init + qb}, v{S[0] + 8 * qb}, v{S[0] + 8 * qb + 1}")
    for i in range(1, 4):
        for qb in range(4):
            k(f"v_max3_f32 v{dst + qb}, v{dst + qb}, v{S[0] + 8 * qb + 2 * i}, v{S[0] + 8 * qb + 2 * i + 1}")


def k2():
    k = Kernel("k2_kernel", 256, vgprs=256, agprs=200, lds=163840)
    END, ATT, LOOP, FB, FBL = (k.newlabel(x) for x in ("end", "att", "loop", "fb", "fbl"))
    k.alt = [FB]
    k.show_pads = 40
    vm = VM()
    k(f"s_cmp_ge_u32 s2, 256\ns_cbranch_scc1 {END}")
    load_args(k, dict(k=4, v=6, wq=8, wo=10, ws=12))
    T = 144
    k(f"""
    v_lshrrev_b32 v{T}, 6, v0
    v_and_b32 v{T + 1}, 63, v0
    s_and_b32 s{SG}, s2, 7
    v_readfirstlane_b32 s{SW}, v{T}
    s_lshr_b32 s{SQB}, s2, 3
    v_lshlrev_b32 v{LN16}, 4, v{T + 1}
    v_lshrrev_b32 v{T + 2}, 4, v{T + 1}
    v_lshrrev_b32 v{T + 3}, 3, v{T + 1}
    v_and_b32 v{T + 4}, 7, v{T + 1}
    v_lshlrev_b32 v{T + 5}, 1, v{T + 2}
    v_xor_b32 v{T + 4}, v{T + 4}, v{T + 5}
    v_lshlrev_b32 v{T + 4}, 4, v{T + 4}
    v_lshl_add_u32 v{WD}, v{T + 3}, 13, v{T + 4}
    s_lshl_b32 s44, s{SG}, 2
    s_add_u32 s44, s44, s{SW}
    s_lshl_b32 s44, s44, 8
    v_add_u32 v{WD}, s44, v{WD}
    s_mul_i32 s{SREG}, s{SW}, {REG}
    s_waitcnt lgkmcnt(0)
    """)
    stamp(k, 0)
    k.srd(SWD, 8, 4 * MB)

    def w_first(ks, phase, stride):
        for n in range(8):
            pre, dma = w_piece(ks, n, (ks + phase) % 3, stride)
            for x in pre + [dma]:
                k(x)
            vm.add(("w", ks, n >> 2))

    w_first(0, 0, 8192)
    k.srd_off(SIO, 12, WS_XH, 2 * MB)
    k.srd(SMD, 12, 0x4000)
    k(f"""
    s_lshl_b32 s44, s{SQB}, 16
    s_lshl_b32 s45, s{SW}, 12
    s_add_u32 s44, s44, s45
    s_lshl_b32 s45, s{SW}, 9
    v_lshlrev_b32 v{T + 5}, 4, v{T + 2}
    """)
    for kbl in range(4):
        for wh in range(2):
            for h in range(2):
                r = 64 + 16 * kbl + 8 * wh + 4 * h
                k(f"buffer_load_dwordx4 {v(r, 4)}, v{T + 5}, s[{SMD}:{SMD + 3}], s45 offen "
                  f"offset:{2048 * wh + 128 * kbl + 64 * h}")
                vm.add("m")
    for tb in range(4):
        for kbl in range(4):
            k(f"buffer_load_dwordx4 {v(16 * tb + 4 * kbl, 4)}, v{LN16}, s[{SIO}:{SIO + 3}], s44 offen "
              f"offset:{1024 * kbl}")
            vm.add(("x", tb))
        if tb < 3:
            k("s_add_u32 s44, s44, 0x4000")
    w_first(1, 0, 8192)
    w_first(2, 0, 8192)
    k(f"s_lshl_b32 s44, s{SG}, 19")
    for d, b in ((SK, 4), (SV, 6)):
        k(f"""
        s_add_u32 s{d}, s{b}, s44
        s_addc_u32 s{d + 1}, s{b + 1}, 0
        s_mov_b32 s{d + 2}, 0x80000
        s_mov_b32 s{d + 3}, 0x20000
        """)
    k(f"""
    v_add_u32 v{LN16B}, {2 * REG}, v{LN16}
    s_mov_b32 s46, {REG}
    v_and_b32 v{T + 6}, 15, v{T + 1}
    v_bfe_u32 v{T + 7}, v{T + 1}, 2, 2
    v_and_b32 v{T + 8}, 3, v{T + 1}
    v_mul_lo_u32 v{T + 9}, v{T + 7}, s46
    v_lshl_add_u32 v{T + 9}, v{T + 8}, 8, v{T + 9}
    v_xor_b32 v{T + 10}, v{T + 6}, v{T + 2}
    v_lshl_add_u32 v{T + 9}, v{T + 10}, 4, v{T + 9}
    """)
    for s_ in range(4):
        k(f"v_xor_b32 v{KA + s_}, {64 * s_}, v{T + 9}")
    k(f"""
    v_mul_lo_u32 v{T + 9}, v{T + 2}, s46
    v_lshl_add_u32 v{T + 9}, v{T + 7}, 8, v{T + 9}
    v_and_b32 v{T + 10}, 1, v{T + 2}
    v_lshl_add_u32 v{T + 11}, v{T + 10}, 2, v{T + 7}
    v_lshl_add_u32 v{T + 9}, v{T + 11}, 5, v{T + 9}
    v_lshl_add_u32 v{T + 9}, v{T + 8}, 3, v{T + 9}
    """)
    for db in range(8):
        k(f"v_xor_b32 v{VA + db}, {32 * db}, v{T + 9}")
    k(f"""
    v_lshrrev_b32 v{T + 9}, 1, v{T + 2}
    v_lshlrev_b32 v{T + 9}, 10, v{T + 9}
    v_lshl_add_u32 v{T + 9}, v{T + 11}, 7, v{T + 9}
    v_lshrrev_b32 v{T + 11}, 1, v{T + 11}
    v_lshl_add_u32 v{T + 9}, v{T + 11}, 5, v{T + 9}
    v_lshl_add_u32 v{T + 9}, v{T + 8}, 3, v{T + 9}
    v_add_u32 v{WAB}, s{SREG}, v{T + 9}
    s_lshl_b32 s44, s{SW}, 12
    v_lshlrev_b32 v{T + 9}, 8, v{T + 2}
    v_add_u32 v{T + 9}, s44, v{T + 9}
    s_lshl_b32 s45, s{SW}, 2
    v_or_b32 v{T + 10}, s45, v{T + 2}
    v_xor_b32 v{T + 10}, v{T + 10}, v{T + 6}
    v_lshl_add_u32 v{KD}, v{T + 10}, 4, v{T + 9}
    s_and_b32 s45, s45, 4
    v_or_b32 v{T + 10}, s45, v{T + 2}
    v_lshlrev_b32 v{T + 10}, 1, v{T + 10}
    v_xor_b32 v{T + 10}, v{T + 10}, v{T + 6}
    v_lshl_add_u32 v{VD}, v{T + 10}, 4, v{T + 9}
    v_mov_b32 v{T + 9}, 0x3f803f80
    v_cmp_eq_u32 vcc, 0, v{T + 6}
    v_cndmask_b32 v{T + 9}, 0, v{T + 9}, vcc
    v_mov_b32 v{T + 10}, {fbits(-3e38)}
    v_lshl_add_u32 v{226}, v{T + 3}, 10, v{T + 4}
    s_lshl_b32 s44, s{SG}, 19
    s_lshl_b32 s45, s{SW}, 8
    s_add_u32 s44, s44, s45
    v_add_u32 v226, s44, v226
    v_add_u32 v{TMP}, s{SREG}, v{LN16}
    s_mov_b32 s{SKO}, 0
    s_mov_b32 s{SVO}, 0
    s_mov_b32 s{SFLAG}, 0
    """)
    for i in range(4):
        k(f"v_accvgpr_write_b32 a{AONE + i}, v{T + 9}")
        k(f"v_accvgpr_write_b32 a{AFL + i}, v{T + 10}")
    for tb in range(4):
        k(vm.wait(("x", tb)))
        for kbl in range(4):
            src, t = 16 * tb + 4 * kbl, T + 8 * (kbl & 1)
            unpack(k, t, src, 4)
            for i in range(4):
                k(f"v_pk_fma_f32 {v(t + 2 * i, 2)}, {v(t + 2 * i, 2)}, {v(72 + 16 * kbl + 2 * i, 2)}, "
                  f"{v(64 + 16 * kbl + 2 * i, 2)}")
            for i in range(4):
                k(f"v_cvt_pk_bf16_f32 v{src + i}, v{t + 2 * i}, v{t + 2 * i + 1}")
            k(f"ds_write_b128 v{TMP}, {v(src, 4)} offset:{4096 * kbl + 1024 * tb}")
    k("s_waitcnt lgkmcnt(0)\ns_barrier")
    stamp(k, 1)
    gemm(k, vm, 0, 8192, {13: [("k", 6), ("k", 7)], 14: [("v", 8), ("k", 9)], 15: [("v", 4)]})
    stamp(k, 2)
    k.srd(SWD, 10, 4 * MB)
    k(f"v_mov_b32 v{WD}, v226")
    for s_ in range(4):
        for tb in range(4):
            t = S[0] + 4 * (tb + 4 * (s_ & 1))
            for h in range(2):
                for i in range(2):
                    r = O + 16 * (2 * s_ + h) + 4 * tb + 2 * i
                    k(f"v_cvt_pk_bf16_f32 v{t + 2 * h + i}, v{r}, v{r + 1}")
        for swap in ("v_permlane32_swap_b32", "v_permlane16_swap_b32"):
            for tb in range(4):
                t = S[0] + 4 * (tb + 4 * (s_ & 1))
                k(f"{swap} v{t}, v{t + 2}")
                k(f"{swap} v{t + 1}, v{t + 3}")
        for tb in range(4):
            t = S[0] + 4 * (tb + 4 * (s_ & 1))
            for i in range(4):
                k(f"v_accvgpr_write_b32 a{AQ + 16 * tb + 4 * s_ + i}, v{t + i}")
    k(f"{ATT}:")
    k("s_waitcnt vmcnt(0)\ns_barrier")
    stamp(k, 3)
    for n in range(8):
        k(k_read(n, 4096 * 6))
    for qb in range(4):
        k(f"v_accvgpr_read_b32 v{NEGM + 4 * qb}, a{AFL + qb}")
    k(f"v_mov_b32 v{L[0]}, 0\nv_mov_b32 v{L[1]}, 0\ns_mov_b32 s{SCNT}, 7")
    for n in range(8):
        k(f"s_waitcnt lgkmcnt({7})")
        for qb in range(4):
            k(qk(0, n >> 1, n & 1, qb, 0))
        k(k_read(n, 4096 * 6 + 2048))
    M = P
    for qb in range(4):
        k(f"v_mov_b32 v{M + qb}, v{NEGM + 4 * qb}")
    lane_max(k, M, M)
    xmax_rows(k, [M + qb for qb in range(4)], M + 4)
    for qb in range(4):
        for i in range(4):
            k(f"v_sub_f32 v{NEGM + 4 * qb + i}, 0, v{M + qb}")
    for e in range(32):
        k(f"v_add_f32 v{S[0] + e}, v{S[0] + e}, v{NEGM + 4 * (e >> 3)}")
    for e in range(NHEAD):
        k(exp(0, e))
    for e in range(1, NHEAD, 2):
        k(cvt(0, e))
    k("s_waitcnt lgkmcnt(0)")
    stage(k, 0, "first")
    k(f"{LOOP}:")
    stage(k, 1, "mid")
    stage(k, 0, "mid", extra=[(56, f"s_sub_u32 s{SCNT}, s{SCNT}, 1"), (58, f"s_cmp_lg_u32 s{SCNT}, 0")])
    k(f"s_cbranch_scc1 {LOOP}")
    stage(k, 1, "last")
    stamp(k, 4)
    vm.q = [("w", ks, h) for ks in range(2) for h in range(2) for _ in range(4)]
    xsum_rows(k, list(L), S[0])
    k(f"""
    v_add_f32 v{S[0] + 1}, v{L[0]}, v{L[1]}
    v_add_f32 v{S[0] + 2}, v{L[2]}, v{L[3]}
    v_add_f32 v{S[0] + 1}, v{S[0] + 1}, v{S[0] + 2}
    v_cmp_ngt_f32 vcc, {fbits(2.0 ** 64)}, v{S[0] + 1}
    """)
    for qb in range(4):
        k(f"v_rcp_f32 v{NEGM + 2 * qb}, v{L[qb]}")
    k(f"""
    s_cmp_lg_u64 vcc, 0
    s_cselect_b32 s44, 1, 0
    s_lshl_b32 s45, s{SW}, 2
    s_add_u32 s45, s45, 16384
    v_mov_b32 v{S[0] + 2}, s44
    v_mul_u32_u24 v{S[0] + 3}, {REG // 16}, v{LN16}
    v_add_u32 v{S[0] + 3}, s45, v{S[0] + 3}
    s_mov_b64 exec, 15
    ds_write_b32 v{S[0] + 3}, v{S[0] + 2}
    s_mov_b64 exec, -1
    v_add_u32 v{TMP}, s{SREG}, v{LN16}
    """)
    for qb in range(4):
        k(f"v_mov_b32 v{NEGM + 2 * qb + 1}, v{NEGM + 2 * qb}")
    for s_ in range(4):
        for tb in range(4):
            t = S[1] + 4 * (tb + 4 * (s_ & 1))
            for h in range(2):
                for i in range(2):
                    r = O + 16 * (2 * s_ + h) + 4 * tb + 2 * i
                    k(f"v_pk_mul_f32 {v(r, 2)}, {v(r, 2)}, {v(NEGM + 2 * tb, 2)}")
            for h in range(2):
                for i in range(2):
                    r = O + 16 * (2 * s_ + h) + 4 * tb + 2 * i
                    k(f"v_cvt_pk_bf16_f32 v{t + 2 * h + i}, v{r}, v{r + 1}")
            k(f"ds_write_b128 v{TMP}, {v(t, 4)} offset:{4096 * s_ + 1024 * tb}")
    k(f"""
    v_mov_b32 v{S[0] + 4}, s{SREG}
    s_waitcnt lgkmcnt(0)
    s_barrier
    ds_read_b128 {v(S[0], 4)}, v{S[0] + 4} offset:16384
    s_waitcnt lgkmcnt(0)
    v_or3_b32 v{S[0]}, v{S[0]}, v{S[0] + 1}, v{S[0] + 2}
    v_or_b32 v{S[0]}, v{S[0]}, v{S[0] + 3}
    v_readfirstlane_b32 s44, v{S[0]}
    s_andn2_b32 s44, s44, s{SFLAG}
    s_cmp_lg_u32 s44, 0
    s_cbranch_scc1 {FB}
    """)
    stamp(k, 5)
    w_first(2, 1, 1024)
    gemm(k, vm, 1, 1024, {})
    stamp(k, 6)
    k(f"s_lshl_b32 s44, s{SG}, 21")
    k(f"""
    s_add_u32 s44, s44, {WS_P}
    s_add_u32 s{SIO}, s12, s44
    s_addc_u32 s{SIO + 1}, s13, 0
    s_mov_b32 s{SIO + 2}, {2 * MB}
    s_mov_b32 s{SIO + 3}, 0x20000
    s_lshl_b32 s44, s{SQB}, 16
    s_lshl_b32 s45, s{SW}, 12
    s_add_u32 s44, s44, s45
    """)
    for tb in range(4):
        for s_ in range(4):
            t = S[0] + 4 * (4 * tb + s_)
            for h in range(2):
                for i in range(2):
                    r = O + 16 * (2 * s_ + h) + 4 * tb + 2 * i
                    k(f"v_cvt_pk_bf16_f32 v{t + 2 * h + i}, v{r}, v{r + 1}")
            k(f"buffer_store_dwordx4 {v(t, 4)}, v{LN16}, s[{SIO}:{SIO + 3}], s44 offen offset:{1024 * s_}")
        if tb < 3:
            k("s_add_u32 s44, s44, 0x4000")
    if PROF:
        k("s_waitcnt vmcnt(0)")
        stamp(k, 7)
        k.srd_off(SIO, 12, 40 * MB, 1 * MB)
        k(f"s_lshl_b32 s44, s2, 2\ns_add_u32 s44, s44, s{SW}\ns_lshl_b32 s44, s44, 5\nv_mov_b32 v8, s44")
        for i in range(8):
            k(f"v_mov_b32 v{i}, s{60 + 2 * i}")
        k(f"buffer_store_dwordx4 v[0:3], v8, s[{SIO}:{SIO + 3}], 0 offen")
        k(f"buffer_store_dwordx4 v[4:7], v8, s[{SIO}:{SIO + 3}], 0 offen offset:16")
    k(f"""
    s_waitcnt vmcnt(0)
    {END}:
    s_endpgm
    {FB}:
    s_mov_b32 s{SFLAG}, 1
    s_mov_b32 s{SKO}, 0
    s_mov_b32 s{SCNT}, 32
    """)
    for qb in range(4):
        k(f"v_accvgpr_read_b32 v{M + qb}, a{AFL + qb}")
    k(f"{FBL}:\ns_waitcnt vmcnt(0)\ns_barrier")
    for p in range(4):
        pre, dma, post = kv_piece("k", 6, p, True)
        for x in pre + [dma] + post:
            k(x)
    k("s_waitcnt vmcnt(0)\ns_barrier")
    for sub in range(2):
        for n in range(8):
            k(k_read(n, 4096 * 6 + 2048 * sub))
        k("s_waitcnt lgkmcnt(0)")
        for n in range(8):
            for qb in range(4):
                k(qk(0, n >> 1, n & 1, qb, 0))
        lane_max(k, M, M)
    k(f"s_sub_u32 s{SCNT}, s{SCNT}, 1\ns_cmp_lg_u32 s{SCNT}, 0\ns_cbranch_scc1 {FBL}")
    for qb in range(4):
        k(f"v_accvgpr_write_b32 a{AFL + qb}, v{M + qb}")
    k(f"s_mov_b32 s{SKO}, 0\ns_mov_b32 s{SVO}, 0\ns_barrier")
    for kind, slot in (("k", 6), ("k", 7), ("v", 8), ("k", 9), ("v", 4)):
        for p in range(4):
            pre, dma, post = kv_piece(kind, slot, p, True)
            for x in pre + [dma] + post:
                k(x)
    k(f"s_branch {ATT}")
    return k
```

```python
from common import *
from k2 import VM, MF

GC0 = -2 * 0.7978845608028654 * LOG2E
GC1 = GC0 * 0.044715


def t1():
    k = Kernel("t1_kernel", 256, vgprs=200, lds=1024)
    END = k.newlabel("end")
    k(f"s_cmp_ge_u32 s2, 256\ns_cbranch_scc1 {END}")
    load_args(k, dict(x=4, ws=6))
    PB, XR, MD, AC, ID, X, T = 0, 64, 72, 120, 136, 144, 176
    FV, XV, MV, LA, TID = 192, 193, 194, 195, 199
    k(f"""
    v_mov_b32 v{TID}, v0
    v_lshrrev_b32 v{T}, 6, v0
    v_and_b32 v{T + 1}, 7, v0
    v_bfe_u32 v{T + 2}, v0, 3, 2
    v_readfirstlane_b32 s3, v{T}
    v_bfe_u32 v{T + 3}, v0, 5, 1
    s_and_b32 s8, s2, 7
    s_lshl_b32 s8, s8, 5
    s_lshr_b32 s9, s2, 3
    s_add_u32 s8, s8, s9
    v_lshlrev_b32 v{FV}, 4, v{T + 1}
    v_lshl_add_u32 v{FV}, v{T + 2}, 8, v{FV}
    v_lshl_add_u32 v{FV}, v{T + 3}, 10, v{FV}
    s_lshr_b32 s9, s8, 1
    s_lshl_b32 s9, s9, 14
    s_and_b32 s10, s8, 1
    s_lshl_b32 s10, s10, 7
    s_add_u32 s9, s9, s10
    s_lshl_b32 s10, s3, 12
    s_add_u32 s9, s9, s10
    s_waitcnt lgkmcnt(0)
    """)
    k.srd_off(12, 6, WS_P, 16 * MB)
    k("s_mov_b32 s10, s9")
    for g in range(8):
        for i in range(2):
            k(f"buffer_load_dwordx4 {v(PB + 8 * g + 4 * i, 4)}, v{FV}, s[12:15], s10 offen offset:{2048 * i}")
        if g < 7:
            k(f"s_add_u32 s10, s10, {2 * MB}")
    k.srd(16, 4, 2 * MB)
    k.srd(20, 6, 0x4000)
    k.srd_off(24, 6, WS_X1, 6 * MB)
    k(f"""
    v_lshlrev_b32 v{XV}, 10, v{T + 1}
    v_lshl_add_u32 v{XV}, v{T + 3}, 6, v{XV}
    v_lshl_add_u32 v{XV}, v{T + 2}, 3, v{XV}
    s_lshl_b32 s10, s8, 13
    s_lshl_b32 s11, s3, 8
    s_add_u32 s10, s10, s11
    v_lshlrev_b32 v{MV}, 7, v{T + 3}
    v_lshl_add_u32 v{MV}, v{T + 2}, 4, v{MV}
    s_lshl_b32 s11, s3, 9
    s_add_u32 s11, s11, 4096
    """)
    for i in range(2):
        for h in range(2):
            k(f"buffer_load_dwordx2 {v(XR + 4 * i + 2 * h, 2)}, v{XV}, s[16:19], s10 offen offset:{128 * i + 32 * h}")
    for wh in range(3):
        for i in range(2):
            for h in range(2):
                k(f"buffer_load_dwordx4 {v(MD + 16 * wh + 8 * i + 4 * h, 4)}, v{MV}, s[20:23], s11 offen "
                  f"offset:{256 * i + 64 * h}")
        if wh < 2:
            k("s_add_u32 s11, s11, 2048")
    k(f"""
    v_bfe_u32 v{T + 4}, v{TID}, 4, 2
    v_bfe_u32 v{T + 5}, v{TID}, 2, 2
    v_and_b32 v{T + 6}, 1, v{TID}
    v_lshlrev_b32 v{T + 6}, 4, v{T + 6}
    v_mov_b32 v{T + 7}, 0x3f80
    v_lshlrev_b32 v{T + 6}, v{T + 6}, v{T + 7}
    v_cmp_eq_u32 vcc, v{T + 4}, v{T + 5}
    v_cndmask_b32 v{T + 6}, 0, v{T + 6}, vcc
    v_and_b32 v{T + 7}, 2, v{TID}
    v_cmp_eq_u32 vcc, 0, v{T + 7}
    v_cndmask_b32 v{ID + 2}, 0, v{T + 6}, vcc
    v_cndmask_b32 v{ID + 3}, v{T + 6}, 0, vcc
    v_mov_b32 v{ID}, 0
    v_mov_b32 v{ID + 1}, 0
    v_mov_b32 v{ID + 4}, 0
    v_mov_b32 v{ID + 5}, 0
    v_lshlrev_b32 v{LA}, 5, v{T + 1}
    s_lshl_b32 s11, s3, 3
    v_add_u32 v{LA + 1}, s11, v{LA}
    v_mov_b32 v{LA + 2}, {fbits(1e-5)}
    """)
    for g in range(8):
        k(f"s_waitcnt vmcnt({16 + 14 - 2 * g})")
        for i in range(2):
            for h in range(2):
                D = v(AC + 8 * i + 4 * h, 4)
                k(f"{MF} {D}, {v(ID + 2 - 2 * h, 4)}, {v(PB + 8 * g + 4 * i, 4)}, {D if g else 0}")
    k("s_waitcnt vmcnt(12)")
    unpack(k, X, XR, 8)
    k("s_waitcnt vmcnt(8)")
    for e in range(16):
        k(f"v_fmac_f32 v{X + e}, v{MD + e}, v{AC + e}")

    def round_store(so):
        for i in range(8):
            k(f"v_cvt_pk_bf16_f32 v{XR + i}, v{X + 2 * i}, v{X + 2 * i + 1}")
        k(f"s_add_u32 s10, s9, {so}")
        for i in range(2):
            k(f"buffer_store_dwordx4 {v(XR + 4 * i, 4)}, v{FV}, s[24:27], s10 offen offset:{2048 * i}")

    def wave_sum(r):
        dpp_add(k, [r], "row_ror:8")
        xsum_rows(k, [r], T + 8)

    def norm(lo):
        for i in range(4):
            k(f"v_add_f32 v{T + i}, v{X + i}, v{X + 4 + i}")
        for j in (8, 12):
            for i in range(4):
                k(f"v_add_f32 v{T + i}, v{T + i}, v{X + j + i}")
        k(f"v_add_f32 v{T}, v{T}, v{T + 1}\nv_add_f32 v{T + 2}, v{T + 2}, v{T + 3}\nv_add_f32 v{T}, v{T}, v{T + 2}")
        wave_sum(T)
        k(f"v_mul_f32 v{T}, {fbits(1 / 128)}, v{T}")
        for e in range(16):
            k(f"v_sub_f32 v{X + e}, v{X + e}, v{T}")
        for i in range(4):
            k(f"v_mul_f32 v{T + 1 + i}, v{X + i}, v{X + i}")
        for j in (4, 8, 12):
            for i in range(4):
                k(f"v_fmac_f32 v{T + 1 + i}, v{X + j + i}, v{X + j + i}")
        k(f"v_add_f32 v{T + 1}, v{T + 1}, v{T + 2}\nv_add_f32 v{T + 3}, v{T + 3}, v{T + 4}\n"
          f"v_add_f32 v{T + 1}, v{T + 1}, v{T + 3}")
        wave_sum(T + 1)
        Q = AC
        k(f"""
        s_mov_b64 exec, 0xff
        ds_write_b64 v{LA + 1}, {v(T, 2)} offset:{lo}
        s_mov_b64 exec, -1
        s_waitcnt lgkmcnt(0)
        s_barrier
        ds_read_b128 {v(Q, 4)}, v{LA} offset:{lo}
        ds_read_b128 {v(Q + 4, 4)}, v{LA} offset:{lo + 16}
        s_waitcnt lgkmcnt(0)
        v_add_f32 v{T + 2}, v{Q}, v{Q + 2}
        v_add_f32 v{T + 3}, v{Q + 4}, v{Q + 6}
        v_add_f32 v{T + 4}, v{Q + 1}, v{Q + 3}
        v_add_f32 v{T + 2}, v{T + 2}, v{T + 3}
        v_add_f32 v{T + 5}, v{Q + 5}, v{Q + 7}
        v_mul_f32 v{T + 2}, 0.25, v{T + 2}
        v_add_f32 v{T + 4}, v{T + 4}, v{T + 5}
        """.replace("0.25", fbits(0.25)))
        for i in range(4):
            k(f"v_sub_f32 v{Q + 2 * i}, v{Q + 2 * i}, v{T + 2}")
        k(f"v_mul_f32 v{T + 3}, v{Q}, v{Q}")
        for i in range(1, 4):
            k(f"v_fmac_f32 v{T + 3}, v{Q + 2 * i}, v{Q + 2 * i}")
        k(f"""
        v_fmamk_f32 v{T + 4}, v{T + 3}, {fbits(128.0)}, v{T + 4}
        v_fmamk_f32 v{T + 4}, v{T + 4}, {fbits(1 / 512)}, v{LA + 2}
        v_rsq_f32 v{T + 4}, v{T + 4}
        v_sub_f32 v{T + 2}, v{T}, v{T + 2}
        v_mul_f32 v{T + 2}, v{T + 2}, v{T + 4}
        """)
        for e in range(16):
            k(f"v_fma_f32 v{X + e}, v{X + e}, v{T + 4}, v{T + 2}")

    round_store(0)
    unpack(k, X, XR, 8)
    norm(0)
    k("s_waitcnt vmcnt(2)")
    for e in range(16):
        k(f"v_fma_f32 v{X + e}, v{X + e}, v{MD + 32 + e}, v{MD + 16 + e}")
    XR = 0
    round_store(WS_H2 - WS_X1)
    unpack(k, X, XR, 8)
    norm(256)
    XR = 8
    round_store(WS_U - WS_X1)
    k(f"s_waitcnt vmcnt(0)\n{END}:\ns_endpgm")
    return k


def gelu(k, rs, t, c0, c1):
    n = len(rs)
    for i, r in enumerate(rs):
        k(f"v_pk_mul_f32 {v(t + 2 * i, 2)}, {v(r, 2)}, {v(r, 2)}")
    for i, r in enumerate(rs):
        k(f"v_pk_fma_f32 {v(t + 2 * i, 2)}, {v(t + 2 * i, 2)}, {v(c1, 2)}, {v(c0, 2)}")
    for i, r in enumerate(rs):
        k(f"v_pk_mul_f32 {v(t + 2 * i, 2)}, {v(t + 2 * i, 2)}, {v(r, 2)}")
    for i in range(2 * n):
        k(f"v_exp_f32 v{t + i}, v{t + i}")
    for i in range(n):
        k(f"v_pk_add_f32 {v(t + 2 * i, 2)}, {v(t + 2 * i, 2)}, 1.0 op_sel_hi:[1,0]")
    for i in range(2 * n):
        k(f"v_rcp_f32 v{t + i}, v{t + i}")
    for i, r in enumerate(rs):
        k(f"v_pk_mul_f32 {v(r, 2)}, {v(t + 2 * i, 2)}, {v(r, 2)}")


def tgemm(name, kind, big, K, xoff, warg, stride):
    NW = 4 if big else 2
    KS = 1 if big else 2
    KB = K // 32
    nch = KB // KS
    R = 8
    grid = 224 if big else 256
    k = Kernel(name, grid, vgprs=256, lds=R * 16384)
    END = k.newlabel("end")
    vm = VM()
    AC = 0
    FR = 64
    EP = 128
    T = 200
    XA, WA, XV, WV, LN, GV = 224, 226, 234, 238, 239, 240
    C0, C1 = 242, 244
    k(f"s_cmp_ge_u32 s2, {grid}\ns_cbranch_scc1 {END}")
    load_args(k, {warg: 4, "ws": 6, "out": 8})
    k(f"""
    v_lshrrev_b32 v{T}, 6, v0
    v_and_b32 v{T + 1}, 63, v0
    s_and_b32 s10, s2, 7
    v_readfirstlane_b32 s3, v{T}
    s_lshr_b32 s11, s2, 3
    """)
    sh = 1 if big else 2
    k(f"""
    s_lshl_b32 s10, s10, {sh}
    s_and_b32 s12, s11, {(1 << sh) - 1}
    s_add_u32 s10, s10, s12
    s_lshr_b32 s11, s11, {sh}
    v_lshlrev_b32 v{LN}, 4, v{T + 1}
    v_lshrrev_b32 v{GV}, 4, v{T + 1}
    v_lshrrev_b32 v{T + 3}, 3, v{T + 1}
    v_and_b32 v{T + 4}, 7, v{T + 1}
    v_lshlrev_b32 v{T + 5}, 1, v{GV}
    v_xor_b32 v{T + 4}, v{T + 4}, v{T + 5}
    v_lshlrev_b32 v{T + 4}, 4, v{T + 4}
    s_lshl_b32 s12, s3, 3
    v_add_u32 v{T + 3}, s12, v{T + 3}
    s_mov_b32 s12, {stride}
    v_mul_lo_u32 v{T + 3}, v{T + 3}, s12
    s_lshl_b32 s12, s11, {8 if big else 7}
    v_add3_u32 v{WV}, v{T + 3}, v{T + 4}, s12
    s_lshl_b32 s30, s3, 11
    s_and_b32 s28, s3, 1
    s_lshr_b32 s29, s3, 1
    s_lshl_b32 s12, s10, {3 if big else 2}
    s_lshl_b32 s13, s3, {1 if big else 0}
    s_add_u32 s12, s12, s13
    """)
    if kind == "t3":
        k(f"s_lshl_b32 s12, s12, 4\nv_and_b32 v{T + 5}, 15, v{T + 1}\nv_add_u32 v{T + 5}, s12, v{T + 5}\n"
          f"v_mov_b32 v{T + 9}, 0x40000000\ns_mov_b32 s31, 0")
        for q, d in enumerate((-1, 1, -2, 2)):
            k(f"""
            v_add_u32 v{T + 6}, {d}, v{T + 5}
            v_lshrrev_b32 v{T + 7}, 4, v{T + 6}
            v_lshlrev_b32 v{T + 7}, 14, v{T + 7}
            v_lshl_add_u32 v{T + 7}, v{GV}, 8, v{T + 7}
            v_and_b32 v{T + 8}, 15, v{T + 6}
            v_lshl_add_u32 v{T + 7}, v{T + 8}, 4, v{T + 7}
            v_cmp_gt_u32 vcc, 2048, v{T + 6}
            v_cndmask_b32 v{XV + q}, v{T + 9}, v{T + 7}, vcc
            """)
    else:
        k(f"s_mul_i32 s31, s12, {KB * 1024}")
    k("s_waitcnt lgkmcnt(0)")
    k.srd(16, 4, K * stride)
    k.srd_off(20, 6, xoff, 2048 * K * 2)

    def dma_chunk(c):
        out = []
        slot = (c % R) * 16384
        xv = XV + (c >> 1) if kind == "t3" else LN
        for j in range(2):
            go = c * 1024 + j * KB * 1024 if big else (2 * c + j) * 1024
            out.append([f"s_add_u32 m0, s30, {slot + 1024 * j}", f"s_add_u32 s32, s31, {go}",
                        f"buffer_load_dwordx4 v{xv}, s[20:23], s32 offen lds"])
        for j in range(2):
            go = c * 32 * stride + 128 * j if big else (2 * c + j) * 32 * stride
            out.append([f"s_add_u32 m0, s30, {slot + 8192 + 1024 * j}", f"s_mov_b32 s32, {go}",
                        f"buffer_load_dwordx4 v{WV}, s[16:19], s32 offen lds"])
        return out

    def issue(c):
        for d in dma_chunk(c):
            for x in d:
                k(x)
            vm.add(("c", c))

    for c in range(2):
        issue(c)
    KBO = 56 if kind == "t4" else 16
    k(f"""
    s_lshl_b32 s12, s10, {3 if big else 2}
    s_lshl_b32 s13, s28, {2 if big else 1}
    s_add_u32 s34, s12, s13
    s_mul_i32 s33, s34, {KBO}
    s_lshl_b32 s12, s11, 1
    s_add_u32 s35, s12, s29
    s_lshl_b32 s12, s35, {1 if big else 0}
    s_add_u32 s33, s33, s12
    s_lshl_b32 s33, s33, 10
    """)
    k.srd(24, 6, WS_END)
    if kind in ("t3", "t5"):
        srcs = [WS_H2] if kind == "t3" else [WS_Y, WS_X1]
        for j, o in enumerate(srcs):
            for t in range(2):
                k(f"s_add_u32 s32, s33, {o + 16384 * t}")
                k(f"buffer_load_dwordx4 {v(EP + 8 * j + 4 * t, 4)}, v{LN}, s[24:27], s32 offen")
                vm.add("e")
    if kind == "t5":
        k(f"v_lshlrev_b32 v{T + 5}, 4, v{GV}\ns_lshl_b32 s32, s35, 7\ns_add_u32 s32, s32, {WS_MOD + 5 * 2048}")
        for h in range(2):
            k(f"buffer_load_dwordx4 {v(EP + 16 + 4 * h, 4)}, v{T + 5}, s[24:27], s32 offen offset:{64 * h}")
            vm.add("e")
    if kind == "t4":
        k(f"""
        v_lshlrev_b32 v{T + 5}, 4, v{GV}
        s_lshl_b32 s32, s35, 8
        s_add_u32 s32, s32, {WS_CSUM}
        """)
        for u in range(4):
            k(f"buffer_load_dwordx4 {v(EP + 32 + 4 * u, 4)}, v{T + 5}, s[24:27], s32 offen offset:{64 * u}")
            vm.add("e")
        k(f"""
        v_and_b32 v{T + 6}, 15, v{T + 1}
        v_lshlrev_b32 v{T + 6}, 7, v{T + 6}
        v_lshl_add_u32 v{T + 6}, v{GV}, 5, v{T + 6}
        s_lshl_b32 s32, s34, 11
        s_add_u32 s32, s32, {WS_STAT}
        """)
        for t in range(4):
            for h in range(2):
                k(f"buffer_load_dwordx4 {v(EP + 8 * t + 4 * h, 4)}, v{T + 6}, s[24:27], s32 offen "
                  f"offset:{2048 * (t & 1) + 16 * h}")
                vm.add("e")
            if t == 1:
                k("s_add_u32 s32, s32, 4096")
    for c in range(2, min(R, nch)):
        issue(c)
    k(f"""
    s_lshl_b32 s12, s28, 12
    v_add_u32 v{XA}, s12, v{LN}
    v_add_u32 v{XA + 1}, 0x10000, v{XA}
    v_bfe_u32 v{T + 5}, v{T + 1}, 2, 2
    v_and_b32 v{T + 6}, 1, v{GV}
    v_lshl_add_u32 v{T + 5}, v{T + 6}, 2, v{T + 5}
    v_lshrrev_b32 v{T + 6}, 1, v{GV}
    v_lshlrev_b32 v{T + 6}, 11, v{T + 6}
    v_lshl_add_u32 v{T + 6}, v{T + 5}, 7, v{T + 6}
    v_lshrrev_b32 v{T + 5}, 1, v{T + 5}
    v_lshl_add_u32 v{T + 6}, v{T + 5}, 5, v{T + 6}
    v_and_b32 v{T + 5}, 3, v{T + 1}
    v_lshl_add_u32 v{T + 6}, v{T + 5}, 3, v{T + 6}
    s_lshl_b32 s12, s29, {10 if big else 6}
    v_xor_b32 v{T + 6}, s12, v{T + 6}
    v_add_u32 v{T + 6}, 8192, v{T + 6}
    """)
    for u in range(NW):
        k(f"v_xor_b32 v{WA + 2 * u}, {32 * u}, v{T + 6}")
        k(f"v_add_u32 v{WA + 2 * u + 1}, 0x10000, v{WA + 2 * u}")
    k(f"v_mov_b32 v{C0}, {fbits(GC0)}\nv_mov_b32 v{C0 + 1}, {fbits(GC0)}\n"
      f"v_mov_b32 v{C1}, {fbits(GC1)}\nv_mov_b32 v{C1 + 1}, {fbits(GC1)}")

    def reads(c):
        hi, so, f = (c % R) >> 2, ((c % R) & 3) * 16384, FR + 32 * (c & 1)
        out = []
        for ks in range(KS):
            for t in range(NW):
                xo = t * 1024 if big else t * 2048 + ks * 1024
                out.append(f"ds_read_b128 {v(f + 4 * (NW * ks + t), 4)}, v{XA + hi} offset:{so + xo}")
            for u in range(NW):
                for rd in range(2):
                    out.append(f"ds_read_b64_tr_b16 {v(f + 16 + 4 * (NW * ks + u) + 2 * rd, 2)}, v{WA + 2 * u + hi} "
                               f"offset:{so + 4096 * rd + 1024 * ks}")
        return out

    def mfmas(c):
        f = FR + 32 * (c & 1)
        out = []
        for ks in range(KS):
            for u in range(NW):
                for t in range(NW):
                    D = v(AC + 4 * (NW * u + t), 4)
                    out.append(f"{MF} {D}, {v(f + 16 + 4 * (NW * ks + u), 4)}, {v(f + 4 * (NW * ks + t), 4)}, "
                               f"{D if c or ks else 0}")
        return out

    for c in range(nch + 1):
        fill = []
        if c < nch:
            k(vm.wait(("c", c)))
        if c:
            k("s_waitcnt lgkmcnt(0)")
        if c < nch:
            k("s_barrier")
            rd = reads(c)
            fill = [rd[i:i + 2] for i in range(0, len(rd), 2)]
            if c and c - 1 + R < nch:
                d = dma_chunk(c - 1 + R)
                fill = fill + d if big else fill[:4] + [fill[4] + d[0] + d[1], fill[5] + d[2] + d[3]]
                for _ in d:
                    vm.add(("c", c - 1 + R))
        mm = mfmas(c - 1) if c else []
        for i in range(max(len(mm), len(fill))):
            if i < len(mm):
                k(mm[i])
            if i < len(fill):
                for x in fill[i]:
                    k(x)
    k(vm.wait("e"))

    def acc(u, t):
        return AC + 4 * (NW * u + t)

    def pack(dst, p, t):
        for h in range(2):
            for i in range(2):
                k(f"v_cvt_pk_bf16_f32 v{dst + 2 * h + i}, v{acc(2 * p + h, t) + 2 * i}, v{acc(2 * p + h, t) + 2 * i + 1}")

    if kind == "t2":
        gelu(k, [AC + 2 * i for i in range(8)], FR, C0, C1)
        for t in range(2):
            pack(FR + 4 * t, 0, t)
            k(f"s_add_u32 s32, s33, {WS_T + 16384 * t}")
            k(f"buffer_store_dwordx4 {v(FR + 4 * t, 4)}, v{LN}, s[24:27], s32 offen")
    if kind == "t3":
        X = FR
        unpack(k, X, EP, 8)
        for t in range(2):
            for e in range(8):
                r = acc(e >> 2, t) + (e & 3)
                k(f"v_add_f32 v{r}, v{r}, v{X + 8 * t + e}")
        for t in range(2):
            pack(EP + 4 * t, 0, t)
            k(f"s_add_u32 s32, s33, {WS_Y + 16384 * t}")
            k(f"buffer_store_dwordx4 {v(EP + 4 * t, 4)}, v{LN}, s[24:27], s32 offen")
        unpack(k, X, EP, 8)
        for t in range(2):
            k(f"v_add_f32 v{T + 2 * t}, v{X + 8 * t}, v{X + 8 * t + 1}")
        for e in range(2, 8):
            for t in range(2):
                k(f"v_add_f32 v{T + 2 * t}, v{T + 2 * t}, v{X + 8 * t + e}")
        xsum_rows(k, [T, T + 2], T + 4)
        for t in range(2):
            k(f"v_mul_f32 v{T + 2 * t}, {fbits(1 / 32)}, v{T + 2 * t}")
        for e in range(16):
            k(f"v_sub_f32 v{X + e}, v{X + e}, v{T + 2 * (e >> 3)}")
        for t in range(2):
            k(f"v_mul_f32 v{T + 2 * t + 1}, v{X + 8 * t}, v{X + 8 * t}")
        for e in range(1, 8):
            for t in range(2):
                k(f"v_fmac_f32 v{T + 2 * t + 1}, v{X + 8 * t + e}, v{X + 8 * t + e}")
        xsum_rows(k, [T + 1, T + 3], T + 4)
        k(f"""
        v_lshlrev_b32 v{T + 6}, 3, v{LN}
        s_lshl_b32 s32, s34, 11
        s_lshl_b32 s12, s35, 3
        s_add_u32 s32, s32, s12
        s_add_u32 s32, s32, {WS_STAT}
        s_mov_b64 exec, 0xffff
        buffer_store_dwordx2 {v(T, 2)}, v{T + 6}, s[24:27], s32 offen
        buffer_store_dwordx2 {v(T + 2, 2)}, v{T + 6}, s[24:27], s32 offen offset:2048
        """)
    if kind == "t4":
        MEAN, M2 = FR, FR + 4
        for t in range(4):
            k(f"v_add_f32 v{MEAN + t}, v{EP + 8 * t}, v{EP + 8 * t + 2}")
            k(f"v_add_f32 v{M2 + t}, v{EP + 8 * t + 1}, v{EP + 8 * t + 3}")
        for j in (4, 6):
            for t in range(4):
                k(f"v_add_f32 v{MEAN + t}, v{MEAN + t}, v{EP + 8 * t + j}")
                k(f"v_add_f32 v{M2 + t}, v{M2 + t}, v{EP + 8 * t + j + 1}")
        xsum_rows(k, [MEAN + t for t in range(4)], FR + 8)
        for t in range(4):
            k(f"v_mul_f32 v{MEAN + t}, {fbits(1 / 16)}, v{MEAN + t}")
        for j in range(0, 8, 2):
            for t in range(4):
                k(f"v_sub_f32 v{EP + 8 * t + j}, v{EP + 8 * t + j}, v{MEAN + t}")
        for j in range(0, 8, 2):
            for t in range(4):
                k(f"v_mul_f32 v{EP + 8 * t + j + 1}, {fbits(32.0)}, v{EP + 8 * t + j}")
            for t in range(4):
                k(f"v_fmac_f32 v{M2 + t}, v{EP + 8 * t + j}, v{EP + 8 * t + j + 1}")
        xsum_rows(k, [M2 + t for t in range(4)], FR + 8)
        RS, NM = EP, EP + 8
        k(f"v_mov_b32 v{T}, {fbits(1e-5)}")
        for t in range(4):
            k(f"v_fmamk_f32 v{M2 + t}, v{M2 + t}, {fbits(1 / 512)}, v{T}")
        for t in range(4):
            k(f"v_rsq_f32 v{RS + 2 * t}, v{M2 + t}")
        for t in range(4):
            k(f"v_sub_f32 v{NM + 2 * t}, 0, v{MEAN + t}")
            k(f"v_mov_b32 v{RS + 2 * t + 1}, v{RS + 2 * t}")
            k(f"v_sub_f32 v{NM + 2 * t + 1}, 0, v{MEAN + t}")
        for t in range(4):
            rs = [acc(u, t) + 2 * i for u in range(4) for i in range(2)]
            for j, r in enumerate(rs):
                k(f"v_pk_fma_f32 {v(r, 2)}, {v(EP + 32 + 2 * j, 2)}, {v(NM + 2 * t, 2)}, {v(r, 2)}")
            for r in rs:
                k(f"v_pk_mul_f32 {v(r, 2)}, {v(r, 2)}, {v(RS + 2 * t, 2)}")
            gelu(k, rs, FR, C0, C1)
            k(f"s_add_u32 s32, s33, {WS_G + 56 * 1024 * t}")
            for p in range(2):
                d = FR + 16 + 8 * t + 4 * p
                pack(d, p, t)
                k(f"buffer_store_dwordx4 {v(d, 4)}, v{LN}, s[24:27], s32 offen offset:{1024 * p}")
    if kind == "t5":
        Y, X = FR, FR + 16
        unpack(k, Y, EP, 8)
        unpack(k, X, EP + 8, 8)
        k.srd(20, 8, 2 * MB)
        for t in range(2):
            for e in range(8):
                r = acc(e >> 2, t) + (e & 3)
                k(f"v_add_f32 v{r}, v{r}, v{Y + 8 * t + e}")
        for t in range(2):
            for e in range(8):
                r = acc(e >> 2, t) + (e & 3)
                k(f"v_fma_f32 v{r}, v{r}, v{EP + 16 + e}, v{X + 8 * t + e}")
        for t in range(2):
            pack(EP + 4 * t, 0, t)
        for swap in ("v_permlane32_swap_b32", "v_permlane16_swap_b32"):
            for t in range(2):
                k(f"{swap} v{EP + 4 * t}, v{EP + 4 * t + 2}")
                k(f"{swap} v{EP + 4 * t + 1}, v{EP + 4 * t + 3}")
        k(f"""
        v_and_b32 v{T + 6}, 15, v{T + 1}
        v_lshlrev_b32 v{T + 6}, 10, v{T + 6}
        v_lshl_add_u32 v{T + 6}, v{GV}, 4, v{T + 6}
        s_lshl_b32 s32, s34, 14
        s_lshl_b32 s12, s35, 6
        s_add_u32 s32, s32, s12
        buffer_store_dwordx4 {v(EP, 4)}, v{T + 6}, s[20:23], s32 offen
        s_add_u32 s32, s32, 16384
        buffer_store_dwordx4 {v(EP + 4, 4)}, v{T + 6}, s[20:23], s32 offen
        """)
    k(f"s_waitcnt vmcnt(0)\n{END}:\ns_endpgm")
    return k


def tails():
    return [t1(),
            tgemm("t2_kernel", "t2", False, 512, WS_U, "w1", 1024),
            tgemm("t3_kernel", "t3", False, 512, WS_T, "w2", 1024),
            tgemm("t4_kernel", "t4", True, 512, WS_Y, "w3", 3584),
            tgemm("t5_kernel", "t5", False, 1792, WS_G, "w4", 1024)]
```

```python
import sys
from common import *
from k1 import k1

ks = [k1()]
try:
    from k2 import k2
    ks.append(k2())
    from tail import tails
    ks += tails()
except ImportError as e:
    print("skip", e)
out = sys.argv[1] if len(sys.argv) > 1 else "full.s"
open(out, "w").write(build(ks))
```

```python
from asmlib import *

MB = 1 << 20
WS_MOD = 0
WS_CSUM = 0x4000
WS_STAT = 0x8000
WS_XH = 1 * MB
WS_P = 4 * MB
WS_X1 = 20 * MB
WS_H2 = 22 * MB
WS_U = 24 * MB
WS_T = 26 * MB
WS_Y = 28 * MB
WS_G = 30 * MB
WS_END = 38 * MB

LOG2E = 1.4426950408889634
QSCALE = 128 ** -0.5 * LOG2E


def fbits(x):
    import struct
    return hex(struct.unpack("<I", struct.pack("<f", x))[0])


def load_args(k, m):
    for n, r in m.items():
        k(f"s_load_dwordx2 s[{r}:{r + 1}], s[0:1], {ARG[n]}")


def unpack(k, dst, src, n):
    for i in range(n):
        k(f"v_lshlrev_b32 v{dst + 2 * i}, 16, v{src + i}")
        k(f"v_and_b32 v{dst + 2 * i + 1}, 0xffff0000, v{src + i}")


def xsum_rows(k, rs, tmp):
    for swap in ("v_permlane32_swap_b32", "v_permlane16_swap_b32"):
        for i, r in enumerate(rs):
            k(f"v_mov_b32 v{tmp + i}, v{r}")
        for i, r in enumerate(rs):
            k(f"{swap} v{r}, v{tmp + i}")
        for i, r in enumerate(rs):
            k(f"v_add_f32 v{r}, v{r}, v{tmp + i}")


def dpp_add(k, rs, ctrl):
    for r in rs:
        k(f"v_add_f32_dpp v{r}, v{r}, v{r} {ctrl} row_mask:0xf bank_mask:0xf")


PROF = [False]


def stamp(k, i):
    if PROF[0]:
        k(f"s_memrealtime s[{60 + 2 * i}:{61 + 2 * i}]\ns_waitcnt lgkmcnt(0)")


def prof_end(k, idx, ws, wave):
    if not PROF[0]:
        return
    k("s_waitcnt vmcnt(0)")
    stamp(k, 7)
    k.srd_off(80, ws, 40 * MB + idx * 65536, 65536)
    k(f"s_mov_b64 exec, -1\ns_lshl_b32 s84, s2, 2\ns_add_u32 s84, s84, s{wave}\ns_lshl_b32 s84, s84, 5\nv_mov_b32 v8, s84")
    for i in range(8):
        k(f"v_mov_b32 v{i}, s{60 + 2 * i}")
    k("buffer_store_dwordx4 v[0:3], v8, s[80:83], 0 offen")
    k("buffer_store_dwordx4 v[4:7], v8, s[80:83], 0 offen offset:16")


def prof_start(k):
    if PROF[0]:
        stamp(k, 0)
        for i in range(1, 8):
            k(f"s_mov_b32 s{60 + 2 * i}, s60")


PRE = ["own"]
WARM = ["wko"]


def prefetch_code(k, sp, va, vj, end, parts):
    here = k.newlabel("pc")
    k(f"s_getpc_b64 s[{sp}:{sp + 1}]\n{here}:\nv_lshlrev_b32 v{va}, 6, v0")
    if parts > 1:
        k(f"s_bfe_u32 s{sp + 2}, s2, {hex(3 | (parts.bit_length() - 1) << 16)}\ns_lshl_b32 s{sp + 2}, s{sp + 2}, 14\n"
          f"v_add_u32 v{va}, s{sp + 2}, v{va}")
    k(f"v_min_u32 v{va}, {end}-{here}-4, v{va}\nglobal_load_dword v{vj}, v{va}, s[{sp}:{sp + 1}]")
```

```python
from common import *


def k1():
    k = Kernel("k1_kernel", 280, vgprs=96, lds=2048)
    END, LN, CS, GO = (k.newlabel(x) for x in ("end", "ln", "cs", "go"))
    k.alt = [LN, CS]
    k(f"s_cmp_ge_u32 s2, 280\ns_cbranch_scc1 {END}")
    prof_start(k)
    load_args(k, dict(x=4, wmod=6, w3=8, c=10, ws=12))
    if PRE[0] == "own":
        prefetch_code(k, 40, 94, 95, END, 1)
    if PRE[0] == "all":
        prefetch_code(k, 40, 94, 95, "L_t5_end_1", 8)
    k(f"""
    v_and_b32 v1, 63, v0
    v_lshrrev_b32 v2, 6, v0
    s_cmp_lt_u32 s2, 128
    v_readfirstlane_b32 s14, v2
    s_waitcnt lgkmcnt(0)
    s_cbranch_scc1 {LN}
    s_cmp_ge_u32 s2, 224
    s_cbranch_scc1 {CS}
    """)
    k.srd(16, 6, 512 * 3072 * 2)
    k(f"""
    s_sub_u32 s15, s2, 128
    s_mov_b32 s24, 6144
    s_lshl_b32 s25, s15, 7
    s_branch {GO}
    {CS}:
    """)
    k.srd(16, 8, 512 * 1792 * 2)
    k(f"""
    s_sub_u32 s15, s2, 224
    s_mov_b32 s24, 3584
    s_lshl_b32 s25, s15, 7
    s_add_u32 s25, s25, {WS_CSUM}
    {GO}:
    """)
    k.srd(20, 10, 1024)
    k.srd(28, 12, 0x8000)
    k(f"""
    v_lshrrev_b32 v3, 2, v0
    v_lshlrev_b32 v4, 4, v3
    buffer_load_dwordx4 v[8:11], v4, s[20:23], 0 offen
    s_lshl_b32 s26, s24, 3
    v_mul_lo_u32 v3, v3, s26
    v_and_b32 v4, 3, v0
    v_lshl_add_u32 v3, v4, 4, v3
    s_lshl_b32 s26, s15, 6
    """)
    for i in range(8):
        k(f"buffer_load_dwordx4 v[{32 + 4 * i}:{35 + 4 * i}], v3, s[16:19], s26 offen")
        if i < 7:
            k("s_add_u32 s26, s26, s24")
    k("s_waitcnt vmcnt(8)")
    stamp(k, 1)
    unpack(k, 12, 8, 4)
    for i in range(8):
        k(f"v_mul_f32 v{20 + i}, {fbits(-LOG2E)}, v{12 + i}")
    for i in range(8):
        k(f"v_exp_f32 v{20 + i}, v{20 + i}")
    for i in range(8):
        k(f"v_add_f32 v{20 + i}, 1.0, v{20 + i}")
    for i in range(8):
        k(f"v_rcp_f32 v{20 + i}, v{20 + i}")
    for i in range(8):
        k(f"v_mul_f32 v{20 + i}, v{12 + i}, v{20 + i}")
    for i in range(4):
        k(f"v_cvt_pk_bf16_f32 v{8 + i}, v{20 + 2 * i}, v{21 + 2 * i}")
    unpack(k, 12, 8, 4)
    k("s_cmp_ge_u32 s2, 224\ns_cselect_b64 vcc, -1, 0")
    for i in range(8):
        k(f"v_cndmask_b32 v{12 + i}, v{12 + i}, 1.0, vcc")
    for e in range(8):
        k(f"v_mov_b32 v{20 + e}, 0")
    for i in range(8):
        k(f"s_waitcnt vmcnt({7 - i})")
        unpack(k, 64, 32 + 4 * i, 4)
        for e in range(8):
            k(f"v_fmac_f32 v{20 + e}, v{12 + i}, v{64 + e}")
    stamp(k, 2)
    acc = list(range(20, 28))
    dpp_add(k, acc, "row_ror:4")
    dpp_add(k, acc, "row_ror:8")
    k(f"""
    v_lshrrev_b32 v3, 4, v0
    v_lshlrev_b32 v3, 7, v3
    v_lshl_add_u32 v3, v4, 5, v3
    v_and_b32 v5, 12, v0
    v_cmp_eq_u32 vcc, 0, v5
    s_and_saveexec_b64 s[32:33], vcc
    ds_write_b128 v3, v[20:23]
    ds_write_b128 v3, v[24:27] offset:16
    s_mov_b64 exec, s[32:33]
    s_waitcnt lgkmcnt(0)
    s_barrier
    s_cmp_lg_u32 s14, 0
    s_cbranch_scc1 {END}
    v_and_b32 v3, 31, v0
    v_lshlrev_b32 v3, 2, v3
    """)
    k("v_add_u32 v6, 1024, v3")
    for i in range(8):
        k(f"ds_read2_b32 v[{32 + 2 * i}:{33 + 2 * i}], v{3 if i < 4 else 6} "
          f"offset0:{64 * (i & 3)} offset1:{64 * (i & 3) + 32}")
    k("s_waitcnt lgkmcnt(0)")
    for n in (8, 4, 2, 1):
        for i in range(n):
            k(f"v_add_f32 v{32 + i}, v{32 + i}, v{32 + n + i}")
    k(f"""
    s_lshr_b32 s26, s15, 4
    s_cmp_eq_u32 s26, 1
    s_cselect_b32 s27, 1.0, 0
    s_cmp_eq_u32 s26, 4
    s_cselect_b32 s27, 1.0, s27
    s_cmp_lt_u32 s26, 2
    s_cselect_b32 s26, {fbits(QSCALE)}, 1.0
    v_cvt_pk_bf16_f32 v33, v32, v32
    v_lshlrev_b32 v33, 16, v33
    v_add_f32 v33, s27, v33
    v_cvt_pk_bf16_f32 v33, v33, v33
    v_lshlrev_b32 v33, 16, v33
    v_mul_f32 v33, s26, v33
    s_cmp_ge_u32 s2, 224
    s_cselect_b64 vcc, -1, 0
    v_cndmask_b32 v33, v33, v32, vcc
    v_cmp_gt_u32 vcc, 32, v0
    s_and_saveexec_b64 s[32:33], vcc
    buffer_store_dword v33, v3, s[28:31], s25 offen
    """)
    prof_end(k, 0, 12, 14)
    k(f"s_waitcnt vmcnt(0)\ns_endpgm\n{LN}:")
    k.srd(16, 4, 2 * MB)
    k.srd_off(20, 12, WS_XH, 2 * MB)
    k(f"""
    v_lshrrev_b32 v3, 2, v1
    v_and_b32 v4, 3, v1
    v_lshlrev_b32 v5, 6, v3
    v_lshl_add_u32 v5, v4, 3, v5
    s_lshl_b32 s15, s2, 14
    s_lshl_b32 s24, s14, 12
    s_add_u32 s24, s24, s15
    """)
    for r in range(4):
        k(f"buffer_load_dwordx2 v[{8 + 4 * r}:{9 + 4 * r}], v5, s[16:19], s24 offen offset:{1024 * r}")
        k(f"buffer_load_dwordx2 v[{10 + 4 * r}:{11 + 4 * r}], v5, s[16:19], s24 offen offset:{1024 * r + 32}")
    k(f"""
    v_lshlrev_b32 v6, 10, v3
    v_lshl_add_u32 v6, v4, 8, v6
    s_lshl_b32 s24, s14, 6
    s_add_u32 s24, s24, s15
    """)
    X, SM, TM = 32, 64, 72
    for r in range(4):
        k(f"s_waitcnt vmcnt({6 - 2 * r})")
        unpack(k, X + 8 * r, 8 + 4 * r, 4)

    def rowsum(src):
        for r in range(4):
            k(f"v_add_f32 v{SM + r}, v{src + 8 * r}, v{src + 8 * r + 1}")
        for e in range(2, 8):
            for r in range(4):
                k(f"v_add_f32 v{SM + r}, v{SM + r}, v{src + 8 * r + e}")

    def allsum():
        rs = [SM + r for r in range(4)]
        dpp_add(k, rs, "quad_perm:[1,0,3,2]")
        dpp_add(k, rs, "quad_perm:[2,3,0,1]")
        dpp_add(k, rs, "row_ror:4")
        dpp_add(k, rs, "row_ror:8")
        xsum_rows(k, rs, TM)

    stamp(k, 2)
    rowsum(X)
    allsum()
    for r in range(4):
        k(f"v_mul_f32 v{SM + r}, {fbits(1 / 512)}, v{SM + r}")
    for r in range(4):
        for e in range(8):
            k(f"v_sub_f32 v{X + 8 * r + e}, v{X + 8 * r + e}, v{SM + r}")
    for r in range(4):
        k(f"v_mul_f32 v{SM + r}, v{X + 8 * r}, v{X + 8 * r}")
    for e in range(1, 8):
        for r in range(4):
            k(f"v_fmac_f32 v{SM + r}, v{X + 8 * r + e}, v{X + 8 * r + e}")
    allsum()
    k(f"v_mov_b32 v7, {fbits(1e-5)}")
    for r in range(4):
        k(f"v_fmamk_f32 v{SM + r}, v{SM + r}, {fbits(1 / 512)}, v7")
    for r in range(4):
        k(f"v_rsq_f32 v{SM + r}, v{SM + r}")
    for r in range(4):
        for e in range(8):
            k(f"v_mul_f32 v{X + 8 * r + e}, v{X + 8 * r + e}, v{SM + r}")
        for i in range(4):
            k(f"v_cvt_pk_bf16_f32 v{8 + 4 * r + i}, v{X + 8 * r + 2 * i}, v{X + 8 * r + 2 * i + 1}")
        k(f"buffer_store_dwordx4 v[{8 + 4 * r}:{11 + 4 * r}], v6, s[20:23], s24 offen offset:{16 * r}")
    prof_end(k, 0, 12, 14)
    k(f"""
    s_waitcnt vmcnt(0)
    {END}:
    s_endpgm
    """)
    return k
```

```python
from common import *

MF = "v_mfma_f32_16x16x32_bf16"
REG = 40960
O, S, P, NEGM = 0, (128, 160), 192, 208
L = (224, 225, 228, 232)
KA, VA, KD, VD = 236, 240, 248, 249
LN16, LN16B, WD, WAB, TMP, JUNK = 250, 251, 252, 253, 254, 255
WA = 128
AQ, AK, AV, AONE, AW, AX, AFL = 0, 64, 96, 128, 132, 164, 196
SW, SK, SV, SWD, SIO, SMD = 3, 16, 20, 24, 28, 32
SREG, SKO, SVO, SSO, SCNT, SFLAG, SG, SQB = 36, 37, 38, 39, 40, 41, 42, 43
BUF = ({"v": (8, 4), "k": (7, 9)}, {"v": (0, 5), "k": (1, 2)})


class VM:
    def __init__(self):
        self.q = []

    def add(self, tag):
        self.q.append(tag)

    def wait(self, tag):
        idx = [i for i, t in enumerate(self.q) if t == tag]
        if not idx:
            return ""
        n = len(self.q) - 1 - idx[-1]
        self.q = self.q[idx[-1] + 1:]
        return f"s_waitcnt vmcnt({n})"


def w_piece(ks, n, pair, stride):
    m2, q = n >> 2, n & 3
    pre = []
    if q == 0:
        pre.append(f"s_add_u32 m0, s{SREG}, {16384 + 8192 * pair + 4096 * m2 - 128 * m2}")
    pre.append(f"s_mov_b32 s{SSO}, {ks * 32 * stride + q * (8 * stride - 1024)}")
    return pre, f"buffer_load_dwordx4 v{WD}, s[{SWD}:{SWD + 3}], s{SSO} offen offset:{1024 * q + 128 * m2} lds"


def kv_piece(kind, slot, p, adv):
    srd, vo, so = (SK, KD, SKO) if kind == "k" else (SV, VD, SVO)
    pre = [f"s_add_u32 m0, s{SREG}, {4096 * slot}"] if p == 0 else []
    post = [f"s_add_u32 s{so}, s{so}, 0x4000"] if p == 3 and adv else []
    return pre, f"buffer_load_dwordx4 v{vo}, s[{srd}:{srd + 3}], s{so} offen offset:{1024 * p} lds", post


def w_read(n, rd, pair):
    return (f"ds_read_b64_tr_b16 {a(AW + 4 * n + 2 * rd, 2)}, v{WA + (n & 3)} "
            f"offset:{16384 + 8192 * pair + 4096 * (n >> 2) + 2048 * rd}")


def x_read(ks, tb):
    r = ks >> 2
    return (f"ds_read_b128 {a(AX + 16 * (ks & 1) + 4 * tb, 4)}, v{LN16 if r < 2 else LN16B} "
            f"offset:{(r & 1) * REG + (ks & 3) * 4096 + tb * 1024}")


def gemm(k, vm, phase, stride, late):
    pair = lambda ks: (ks + phase) % 3
    for u in range(4):
        k(f"v_xor_b32 v{WA + u}, {32 * u}, v{WAB}")
    for tb in range(4):
        k(x_read(0, tb))
    k(vm.wait(("w", 0, 1)))
    for n in range(8):
        k(w_read(n, 0, pair(0)))
        k(w_read(n, 1, pair(0)))
    k("s_waitcnt lgkmcnt(8)")
    for ks in range(16):
        for n in range(8):
            pre, dma, post = [], None, []
            if ks + 3 < 16:
                pre, dma = w_piece(ks + 3, n, pair(ks), stride)
                tag = ("w", ks + 3, n >> 2)
            elif (n >> 2) < len(late.get(ks, [])):
                kind, slot = late[ks][n >> 2]
                assert slot == 4 + 2 * pair(ks) + (n >> 2)
                pre, dma, post = kv_piece(kind, slot, n & 3, True)
                tag = "kv"
            for tb in range(4):
                D = v(O + 16 * n + 4 * tb, 4)
                k(f"{MF} {D}, {a(AW + 4 * n, 4)}, {a(AX + 16 * (ks & 1) + 4 * tb, 4)}, {D if ks else 0}")
                if tb == 0 and n < 4 and ks < 15:
                    k(x_read(ks + 1, n))
                if tb == 1:
                    if n == 3:
                        k(f"s_waitcnt lgkmcnt({10 if ks < 15 else 0})")
                    if n == 7 and ks < 15:
                        k("s_waitcnt lgkmcnt(6)")
                    if n & 3 == 0 and ks < 15:
                        k(vm.wait(("w", ks + 1, n >> 2)))
                    for x in pre:
                        k(x)
                if tb == 2 and dma:
                    k(dma)
                    vm.add(tag)
                if tb == 3:
                    for x in post:
                        k(x)
                    if ks < 15:
                        k(w_read(n, 0, pair(ks + 1)))
                        k(w_read(n, 1, pair(ks + 1)))


def qk(sb, s_, kb, qb, c0):
    D = v(S[sb] + 8 * qb + 4 * kb, 4)
    return f"{MF} {D}, {a(AK + 8 * s_ + 4 * kb, 4)}, {a(AQ + 16 * qb + 4 * s_, 4)}, {D if s_ else c0}"


def k_read(n, off):
    return f"ds_read_b128 {a(AK + 4 * n, 4)}, v{KA + (n >> 1)} offset:{off + 1024 * (n & 1)}"


def exp(sb, e):
    return f"v_exp_f32 v{S[sb] + e}, v{S[sb] + e}"


def cvt(sb, e):
    return f"v_cvt_pk_bf16_f32 v{P + (e >> 1)}, v{S[sb] + e - 1}, v{S[sb] + e}"


EGAP = [0, 2, 5, 7, 9, 11, 14, 16] + list(range(18, 66, 2))
DGAP = [4, 8, 13, 17]
VGAP = [1, 6, 10, 15, 19, 21, 21, 23, 25, 25, 27, 29, 29, 31, 33, 35]
CGAP = [1, 6, 10, 15, 19, 23, 27, 31, 35, 39, 43, 47, 51, 55, 59, 63]
AGAP = [33, 37, 41, 45, 49, 53, 53, 55, 57, 57, 59, 61, 61, 63, 65, 65]
NHEAD = 9


def iteration(k, j, voff, koff, dmas, first=False, do_qk=True, barrier=False, drain=False, extra=()):
    cur, nxt = j & 1, (j + 1) & 1
    mf = [qk(nxt, s_, kb, qb, v(NEGM + 4 * qb, 4)) if do_qk else None
          for s_ in range(4) for kb in range(2) for qb in range(4)]
    for qp in range(2):
        for db in range(8):
            for q in range(2):
                D = v(O + 16 * db + 4 * (2 * qp + q), 4)
                mf.append(f"{MF} {D}, {a(AV + 4 * db, 4)}, {v(P + 4 * (2 * qp + q), 4)}, {0 if first else D}")
    for pos, qb in ((52, 2), (59, 3)):
        D = v(L[qb], 4)
        mf.insert(pos, f"{MF} {D}, {a(AONE, 4)}, {v(P + 4 * qb, 4)}, {0 if first else D}")
    sc = [[] for _ in range(66)]
    ds = [[] for _ in range(66)]
    va = [[] for _ in range(66)]
    if barrier:
        sc[0].append("s_barrier")
    for i, g in enumerate(EGAP):
        e = i + NHEAD
        if e < 32:
            va[g].append(exp(cur, e))
        elif do_qk:
            va[g].append(exp(nxt, e - 32))
    for i, g in enumerate(CGAP):
        e = 2 * i + NHEAD
        if e < 32:
            va[g].append(cvt(cur, e))
        elif do_qk:
            va[g].append(cvt(nxt, e - 32))
    for i, g in enumerate(AGAP):
        qb = i & 1
        va[g].append(f"v_add_f32 v{L[qb]}, v{L[qb]}, v{S[cur] + 8 * qb + (i >> 1)}")
    for i, g in enumerate(VGAP):
        ds[g].append(f"ds_read_b64_tr_b16 {a(AV + 2 * i, 2)}, v{VA + (i >> 1)} offset:{voff + 1024 * (i & 1)}")
    nk = 8 if koff is not None else 0
    for n in range(nk):
        ds[37 + 2 * n].append(k_read(n, koff))
    sc[30].append("s_waitcnt lgkmcnt(5)")
    sc[38].append(f"s_waitcnt lgkmcnt({3 if nk else 2})")
    sc[44].append(f"s_waitcnt lgkmcnt({4 if nk else 0})")
    sc[62].append("s_waitcnt lgkmcnt(0)")
    if drain:
        sc[64].append("s_waitcnt vmcnt(0)")
    for g, (pre, dma, post) in zip(DGAP, dmas):
        sc[g - 1] += pre[-1:]
        sc[g - 2] += pre[:-1]
        ds[g].append(dma)
        sc[g + 1] += post
    for g, x in extra:
        sc[g].append(x)
    for g in range(66):
        for x in ([mf[g]] if mf[g] else []) + sc[g] + ds[g] + va[g]:
            k(x)


def stage(k, par, kind, extra=()):
    cur, oth = BUF[par], BUF[1 - par]
    for i in range(4):
        voff = 4096 * cur["v"][i >> 1] + 2048 * (i & 1)
        koff = 4096 * cur["k"][i >> 1] + 2048 * (i & 1)
        if kind == "last":
            dm = []
            for p in range(4):
                pre, dma = w_piece(i >> 1, 4 * (i & 1) + p, 1 + (i >> 1), 1024)
                dm.append((pre, dma, []))
            iteration(k, i, voff, koff if i < 2 else None, dm, do_qk=i < 3, barrier=i in (0, 2))
        else:
            t = "vk"[i & 1]
            dm = [kv_piece(t, oth[t][i >> 1], p, True) for p in range(4)]
            iteration(k, i, voff, koff, dm, first=kind == "first" and i == 0, barrier=i == 0 and kind != "first",
                      drain=i == 3, extra=extra if i == 3 else ())


def xmax_rows(k, rs, tmp):
    for swap in ("v_permlane32_swap_b32", "v_permlane16_swap_b32"):
        for i, r in enumerate(rs):
            k(f"v_mov_b32 v{tmp + i}, v{r}")
        for i, r in enumerate(rs):
            k(f"{swap} v{r}, v{tmp + i}")
        for i, r in enumerate(rs):
            k(f"v_max_f32 v{r}, v{r}, v{tmp + i}")


def lane_max(k, dst, init):
    for qb in range(4):
        k(f"v_max3_f32 v{dst + qb}, v{init + qb}, v{S[0] + 8 * qb}, v{S[0] + 8 * qb + 1}")
    for i in range(1, 4):
        for qb in range(4):
            k(f"v_max3_f32 v{dst + qb}, v{dst + qb}, v{S[0] + 8 * qb + 2 * i}, v{S[0] + 8 * qb + 2 * i + 1}")


def k2():
    k = Kernel("k2_kernel", 256, vgprs=256, agprs=200, lds=163840)
    END, ATT, LOOP, FB, FBL = (k.newlabel(x) for x in ("end", "att", "loop", "fb", "fbl"))
    k.alt = [FB]
    k.show_pads = 0
    vm = VM()
    k(f"s_cmp_ge_u32 s2, 256\ns_cbranch_scc1 {END}")
    prof_start(k)
    load_args(k, dict(k=4, v=6, wq=8, wo=10, ws=12))
    if PRE[0]:
        prefetch_code(k, 48, JUNK, JUNK, END, 4)
    T = 144
    k(f"""
    v_lshrrev_b32 v{T}, 6, v0
    v_and_b32 v{T + 1}, 63, v0
    s_and_b32 s{SG}, s2, 7
    v_readfirstlane_b32 s{SW}, v{T}
    s_lshr_b32 s{SQB}, s2, 3
    v_lshlrev_b32 v{LN16}, 4, v{T + 1}
    v_lshrrev_b32 v{T + 2}, 4, v{T + 1}
    v_lshrrev_b32 v{T + 3}, 3, v{T + 1}
    v_and_b32 v{T + 4}, 7, v{T + 1}
    v_lshlrev_b32 v{T + 5}, 1, v{T + 2}
    v_xor_b32 v{T + 4}, v{T + 4}, v{T + 5}
    v_lshlrev_b32 v{T + 4}, 4, v{T + 4}
    v_lshl_add_u32 v{WD}, v{T + 3}, 13, v{T + 4}
    s_lshl_b32 s44, s{SG}, 2
    s_add_u32 s44, s44, s{SW}
    s_lshl_b32 s44, s44, 8
    v_add_u32 v{WD}, s44, v{WD}
    s_mul_i32 s{SREG}, s{SW}, {REG}
    s_waitcnt lgkmcnt(0)
    """)
    k.srd(SWD, 8, 4 * MB)

    def w_first(ks, phase, stride):
        for n in range(8):
            pre, dma = w_piece(ks, n, (ks + phase) % 3, stride)
            for x in pre + [dma]:
                k(x)
            vm.add(("w", ks, n >> 2))

    if "w" in WARM[0]:
        k(f"""
        v_lshrrev_b32 v{T + 6}, 4, v0
        v_and_b32 v{T + 7}, 15, v0
        v_lshlrev_b32 v{T + 6}, 13, v{T + 6}
        v_lshl_add_u32 v{T + 6}, v{T + 7}, 6, v{T + 6}
        s_lshl_b32 s44, s{SG}, 10
        s_lshl_b32 s45, s{SQB}, 17
        s_add_u32 s44, s44, s45
        buffer_load_dword v{JUNK}, v{T + 6}, s[{SWD}:{SWD + 3}], s44 offen
        """)
    w_first(0, 0, 8192)
    k.srd_off(SIO, 12, WS_XH, 2 * MB)
    k.srd(SMD, 12, 0x4000)
    k(f"""
    s_lshl_b32 s44, s{SQB}, 16
    s_lshl_b32 s45, s{SW}, 12
    s_add_u32 s44, s44, s45
    s_lshl_b32 s45, s{SW}, 9
    v_lshlrev_b32 v{T + 5}, 4, v{T + 2}
    """)
    for kbl in range(4):
        for wh in range(2):
            for h in range(2):
                r = 64 + 16 * kbl + 8 * wh + 4 * h
                k(f"buffer_load_dwordx4 {v(r, 4)}, v{T + 5}, s[{SMD}:{SMD + 3}], s45 offen "
                  f"offset:{2048 * wh + 128 * kbl + 64 * h}")
                vm.add("m")
    for tb in range(4):
        for kbl in range(4):
            k(f"buffer_load_dwordx4 {v(16 * tb + 4 * kbl, 4)}, v{LN16}, s[{SIO}:{SIO + 3}], s44 offen "
              f"offset:{1024 * kbl}")
            vm.add(("x", tb))
        if tb < 3:
            k("s_add_u32 s44, s44, 0x4000")
    w_first(1, 0, 8192)
    w_first(2, 0, 8192)
    k(f"s_lshl_b32 s44, s{SG}, 19")
    for d, b in ((SK, 4), (SV, 6)):
        k(f"""
        s_add_u32 s{d}, s{b}, s44
        s_addc_u32 s{d + 1}, s{b + 1}, 0
        s_mov_b32 s{d + 2}, 0x80000
        s_mov_b32 s{d + 3}, 0x20000
        """)
    if "k" in WARM[0]:
        k(f"""
        v_lshlrev_b32 v227, 2, v{LN16}
        s_lshl_b32 s44, s{SQB}, 14
        s_lshl_b32 s45, s{SW}, 12
        s_add_u32 s44, s44, s45
        buffer_load_dword v{JUNK}, v227, s[{SK}:{SK + 3}], s44 offen
        buffer_load_dword v{JUNK}, v227, s[{SV}:{SV + 3}], s44 offen
        """)
        vm.add("j")
        vm.add("j")
    k(f"""
    v_add_u32 v{LN16B}, {2 * REG}, v{LN16}
    s_mov_b32 s46, {REG}
    v_and_b32 v{T + 6}, 15, v{T + 1}
    v_bfe_u32 v{T + 7}, v{T + 1}, 2, 2
    v_and_b32 v{T + 8}, 3, v{T + 1}
    v_mul_lo_u32 v{T + 9}, v{T + 7}, s46
    v_lshl_add_u32 v{T + 9}, v{T + 8}, 8, v{T + 9}
    v_xor_b32 v{T + 10}, v{T + 6}, v{T + 2}
    v_lshl_add_u32 v{T + 9}, v{T + 10}, 4, v{T + 9}
    """)
    for s_ in range(4):
        k(f"v_xor_b32 v{KA + s_}, {64 * s_}, v{T + 9}")
    k(f"""
    v_mul_lo_u32 v{T + 9}, v{T + 2}, s46
    v_lshl_add_u32 v{T + 9}, v{T + 7}, 8, v{T + 9}
    v_and_b32 v{T + 10}, 1, v{T + 2}
    v_lshl_add_u32 v{T + 11}, v{T + 10}, 2, v{T + 7}
    v_lshl_add_u32 v{T + 9}, v{T + 11}, 5, v{T + 9}
    v_lshl_add_u32 v{T + 9}, v{T + 8}, 3, v{T + 9}
    """)
    for db in range(8):
        k(f"v_xor_b32 v{VA + db}, {32 * db}, v{T + 9}")
    k(f"""
    v_lshrrev_b32 v{T + 9}, 1, v{T + 2}
    v_lshlrev_b32 v{T + 9}, 10, v{T + 9}
    v_lshl_add_u32 v{T + 9}, v{T + 11}, 7, v{T + 9}
    v_lshrrev_b32 v{T + 11}, 1, v{T + 11}
    v_lshl_add_u32 v{T + 9}, v{T + 11}, 5, v{T + 9}
    v_lshl_add_u32 v{T + 9}, v{T + 8}, 3, v{T + 9}
    v_add_u32 v{WAB}, s{SREG}, v{T + 9}
    s_lshl_b32 s44, s{SW}, 12
    v_lshlrev_b32 v{T + 9}, 8, v{T + 2}
    v_add_u32 v{T + 9}, s44, v{T + 9}
    s_lshl_b32 s45, s{SW}, 2
    v_or_b32 v{T + 10}, s45, v{T + 2}
    v_xor_b32 v{T + 10}, v{T + 10}, v{T + 6}
    v_lshl_add_u32 v{KD}, v{T + 10}, 4, v{T + 9}
    s_and_b32 s45, s45, 4
    v_or_b32 v{T + 10}, s45, v{T + 2}
    v_lshlrev_b32 v{T + 10}, 1, v{T + 10}
    v_xor_b32 v{T + 10}, v{T + 10}, v{T + 6}
    v_lshl_add_u32 v{VD}, v{T + 10}, 4, v{T + 9}
    v_mov_b32 v{T + 9}, 0x3f803f80
    v_cmp_eq_u32 vcc, 0, v{T + 6}
    v_cndmask_b32 v{T + 9}, 0, v{T + 9}, vcc
    v_mov_b32 v{T + 10}, {fbits(-3e38)}
    v_lshl_add_u32 v{226}, v{T + 3}, 10, v{T + 4}
    s_lshl_b32 s44, s{SG}, 19
    s_lshl_b32 s45, s{SW}, 8
    s_add_u32 s44, s44, s45
    v_add_u32 v226, s44, v226
    v_add_u32 v{TMP}, s{SREG}, v{LN16}
    s_mov_b32 s{SKO}, 0
    s_mov_b32 s{SVO}, 0
    s_mov_b32 s{SFLAG}, 0
    """)
    for i in range(4):
        k(f"v_accvgpr_write_b32 a{AONE + i}, v{T + 9}")
        k(f"v_accvgpr_write_b32 a{AFL + i}, v{T + 10}")
    for tb in range(4):
        k(vm.wait(("x", tb)))
        for kbl in range(4):
            src, t = 16 * tb + 4 * kbl, T + 8 * (kbl & 1)
            unpack(k, t, src, 4)
            for i in range(4):
                k(f"v_pk_fma_f32 {v(t + 2 * i, 2)}, {v(t + 2 * i, 2)}, {v(72 + 16 * kbl + 2 * i, 2)}, "
                  f"{v(64 + 16 * kbl + 2 * i, 2)}")
            for i in range(4):
                k(f"v_cvt_pk_bf16_f32 v{src + i}, v{t + 2 * i}, v{t + 2 * i + 1}")
            k(f"ds_write_b128 v{TMP}, {v(src, 4)} offset:{4096 * kbl + 1024 * tb}")
    k("s_waitcnt lgkmcnt(0)\ns_barrier")
    stamp(k, 1)
    gemm(k, vm, 0, 8192, {13: [("k", 6), ("k", 7)], 14: [("v", 8), ("k", 9)], 15: [("v", 4)]})
    stamp(k, 2)
    k.srd(SWD, 10, 4 * MB)
    k(f"v_mov_b32 v{WD}, v226")
    for s_ in range(4):
        for tb in range(4):
            t = S[0] + 4 * (tb + 4 * (s_ & 1))
            for h in range(2):
                for i in range(2):
                    r = O + 16 * (2 * s_ + h) + 4 * tb + 2 * i
                    k(f"v_cvt_pk_bf16_f32 v{t + 2 * h + i}, v{r}, v{r + 1}")
        for swap in ("v_permlane32_swap_b32", "v_permlane16_swap_b32"):
            for tb in range(4):
                t = S[0] + 4 * (tb + 4 * (s_ & 1))
                k(f"{swap} v{t}, v{t + 2}")
                k(f"{swap} v{t + 1}, v{t + 3}")
        for tb in range(4):
            t = S[0] + 4 * (tb + 4 * (s_ & 1))
            for i in range(4):
                k(f"v_accvgpr_write_b32 a{AQ + 16 * tb + 4 * s_ + i}, v{t + i}")
    k(f"{ATT}:")
    k("s_waitcnt vmcnt(0)\ns_barrier")
    stamp(k, 3)
    if "o" in WARM[0]:
        k(f"""
        v_lshlrev_b32 v227, 2, v{LN16}
        s_lshl_b32 s44, s{SG}, 19
        s_lshl_b32 s45, s{SQB}, 14
        s_add_u32 s44, s44, s45
        s_lshl_b32 s45, s{SW}, 12
        s_add_u32 s44, s44, s45
        buffer_load_dword v{JUNK}, v227, s[{SWD}:{SWD + 3}], s44 offen
        """)
    for n in range(8):
        k(k_read(n, 4096 * 6))
    for qb in range(4):
        k(f"v_accvgpr_read_b32 v{NEGM + 4 * qb}, a{AFL + qb}")
    k(f"v_mov_b32 v{L[0]}, 0\nv_mov_b32 v{L[1]}, 0\ns_mov_b32 s{SCNT}, 7")
    for n in range(8):
        k(f"s_waitcnt lgkmcnt({7})")
        for qb in range(4):
            k(qk(0, n >> 1, n & 1, qb, 0))
        k(k_read(n, 4096 * 6 + 2048))
    M = P
    for qb in range(4):
        k(f"v_mov_b32 v{M + qb}, v{NEGM + 4 * qb}")
    lane_max(k, M, M)
    xmax_rows(k, [M + qb for qb in range(4)], M + 4)
    for qb in range(4):
        for i in range(4):
            k(f"v_sub_f32 v{NEGM + 4 * qb + i}, 0, v{M + qb}")
    for e in range(32):
        k(f"v_add_f32 v{S[0] + e}, v{S[0] + e}, v{NEGM + 4 * (e >> 3)}")
    for e in range(NHEAD):
        k(exp(0, e))
    for e in range(1, NHEAD, 2):
        k(cvt(0, e))
    k("s_waitcnt lgkmcnt(0)")
    stage(k, 0, "first")
    k(f"{LOOP}:")
    stage(k, 1, "mid")
    stage(k, 0, "mid", extra=[(56, f"s_sub_u32 s{SCNT}, s{SCNT}, 1"), (58, f"s_cmp_lg_u32 s{SCNT}, 0")])
    k(f"s_cbranch_scc1 {LOOP}")
    stage(k, 1, "last")
    stamp(k, 4)
    vm.q = [("w", ks, h) for ks in range(2) for h in range(2) for _ in range(4)]
    xsum_rows(k, list(L), S[0])
    k(f"""
    v_add_f32 v{S[0] + 1}, v{L[0]}, v{L[1]}
    v_add_f32 v{S[0] + 2}, v{L[2]}, v{L[3]}
    v_add_f32 v{S[0] + 1}, v{S[0] + 1}, v{S[0] + 2}
    v_cmp_ngt_f32 vcc, {fbits(2.0 ** 64)}, v{S[0] + 1}
    """)
    for qb in range(4):
        k(f"v_rcp_f32 v{NEGM + 2 * qb}, v{L[qb]}")
    k(f"""
    s_cmp_lg_u64 vcc, 0
    s_cselect_b32 s44, 1, 0
    s_lshl_b32 s45, s{SW}, 2
    s_add_u32 s45, s45, 16384
    v_mov_b32 v{S[0] + 2}, s44
    v_mul_u32_u24 v{S[0] + 3}, {REG // 16}, v{LN16}
    v_add_u32 v{S[0] + 3}, s45, v{S[0] + 3}
    s_mov_b64 exec, 15
    ds_write_b32 v{S[0] + 3}, v{S[0] + 2}
    s_mov_b64 exec, -1
    v_add_u32 v{TMP}, s{SREG}, v{LN16}
    """)
    for qb in range(4):
        k(f"v_mov_b32 v{NEGM + 2 * qb + 1}, v{NEGM + 2 * qb}")
    for s_ in range(4):
        for tb in range(4):
            t = S[1] + 4 * (tb + 4 * (s_ & 1))
            for h in range(2):
                for i in range(2):
                    r = O + 16 * (2 * s_ + h) + 4 * tb + 2 * i
                    k(f"v_pk_mul_f32 {v(r, 2)}, {v(r, 2)}, {v(NEGM + 2 * tb, 2)}")
            for h in range(2):
                for i in range(2):
                    r = O + 16 * (2 * s_ + h) + 4 * tb + 2 * i
                    k(f"v_cvt_pk_bf16_f32 v{t + 2 * h + i}, v{r}, v{r + 1}")
            k(f"ds_write_b128 v{TMP}, {v(t, 4)} offset:{4096 * s_ + 1024 * tb}")
    k(f"""
    v_mov_b32 v{S[0] + 4}, s{SREG}
    s_waitcnt lgkmcnt(0)
    s_barrier
    ds_read_b128 {v(S[0], 4)}, v{S[0] + 4} offset:16384
    s_waitcnt lgkmcnt(0)
    v_or3_b32 v{S[0]}, v{S[0]}, v{S[0] + 1}, v{S[0] + 2}
    v_or_b32 v{S[0]}, v{S[0]}, v{S[0] + 3}
    v_readfirstlane_b32 s44, v{S[0]}
    s_andn2_b32 s44, s44, s{SFLAG}
    s_cmp_lg_u32 s44, 0
    s_cbranch_scc1 {FB}
    """)
    stamp(k, 5)
    w_first(2, 1, 1024)
    gemm(k, vm, 1, 1024, {})
    stamp(k, 6)
    k(f"s_lshl_b32 s44, s{SG}, 21")
    k(f"""
    s_add_u32 s44, s44, {WS_P}
    s_add_u32 s{SIO}, s12, s44
    s_addc_u32 s{SIO + 1}, s13, 0
    s_mov_b32 s{SIO + 2}, {2 * MB}
    s_mov_b32 s{SIO + 3}, 0x20000
    s_lshl_b32 s44, s{SQB}, 16
    s_lshl_b32 s45, s{SW}, 12
    s_add_u32 s44, s44, s45
    """)
    for tb in range(4):
        for s_ in range(4):
            t = S[0] + 4 * (4 * tb + s_)
            for h in range(2):
                for i in range(2):
                    r = O + 16 * (2 * s_ + h) + 4 * tb + 2 * i
                    k(f"v_cvt_pk_bf16_f32 v{t + 2 * h + i}, v{r}, v{r + 1}")
            k(f"buffer_store_dwordx4 {v(t, 4)}, v{LN16}, s[{SIO}:{SIO + 3}], s44 offen offset:{1024 * s_}")
        if tb < 3:
            k("s_add_u32 s44, s44, 0x4000")
    prof_end(k, 1, 12, SW)
    k(f"""
    s_waitcnt vmcnt(0)
    {END}:
    s_endpgm
    {FB}:
    s_mov_b32 s{SFLAG}, 1
    s_mov_b32 s{SKO}, 0
    s_mov_b32 s{SCNT}, 32
    """)
    for qb in range(4):
        k(f"v_accvgpr_read_b32 v{M + qb}, a{AFL + qb}")
    k(f"{FBL}:\ns_waitcnt vmcnt(0)\ns_barrier")
    for p in range(4):
        pre, dma, post = kv_piece("k", 6, p, True)
        for x in pre + [dma] + post:
            k(x)
    k("s_waitcnt vmcnt(0)\ns_barrier")
    for sub in range(2):
        for n in range(8):
            k(k_read(n, 4096 * 6 + 2048 * sub))
        k("s_waitcnt lgkmcnt(0)")
        for n in range(8):
            for qb in range(4):
                k(qk(0, n >> 1, n & 1, qb, 0))
        lane_max(k, M, M)
    k(f"s_sub_u32 s{SCNT}, s{SCNT}, 1\ns_cmp_lg_u32 s{SCNT}, 0\ns_cbranch_scc1 {FBL}")
    for qb in range(4):
        k(f"v_accvgpr_write_b32 a{AFL + qb}, v{M + qb}")
    k(f"s_mov_b32 s{SKO}, 0\ns_mov_b32 s{SVO}, 0\ns_barrier")
    for kind, slot in (("k", 6), ("k", 7), ("v", 8), ("k", 9), ("v", 4)):
        for p in range(4):
            pre, dma, post = kv_piece(kind, slot, p, True)
            for x in pre + [dma] + post:
                k(x)
    k(f"s_branch {ATT}")
    return k
```

```python
from common import *
from k2 import VM, MF

GC0 = -2 * 0.7978845608028654 * LOG2E
GC1 = GC0 * 0.044715


def t1():
    k = Kernel("t1_kernel", 256, vgprs=200, lds=1024)
    END = k.newlabel("end")
    k(f"s_cmp_ge_u32 s2, 256\ns_cbranch_scc1 {END}")
    prof_start(k)
    load_args(k, dict(x=4, ws=6))
    if PRE[0]:
        prefetch_code(k, 48, 198, 198, END, 1)
    PB, XR, MD, AC, ID, X, T = 0, 64, 72, 120, 136, 144, 176
    FV, XV, MV, LA, TID = 192, 193, 194, 195, 199
    k(f"""
    v_mov_b32 v{TID}, v0
    v_lshrrev_b32 v{T}, 6, v0
    v_and_b32 v{T + 1}, 7, v0
    v_bfe_u32 v{T + 2}, v0, 3, 2
    v_readfirstlane_b32 s3, v{T}
    v_bfe_u32 v{T + 3}, v0, 5, 1
    s_and_b32 s8, s2, 7
    s_lshl_b32 s8, s8, 5
    s_lshr_b32 s9, s2, 3
    s_add_u32 s8, s8, s9
    v_lshlrev_b32 v{FV}, 4, v{T + 1}
    v_lshl_add_u32 v{FV}, v{T + 2}, 8, v{FV}
    v_lshl_add_u32 v{FV}, v{T + 3}, 10, v{FV}
    s_lshr_b32 s9, s8, 1
    s_lshl_b32 s9, s9, 14
    s_and_b32 s10, s8, 1
    s_lshl_b32 s10, s10, 7
    s_add_u32 s9, s9, s10
    s_lshl_b32 s10, s3, 12
    s_add_u32 s9, s9, s10
    s_waitcnt lgkmcnt(0)
    """)
    k.srd_off(12, 6, WS_P, 16 * MB)
    k("s_mov_b32 s10, s9")
    for g in range(8):
        for i in range(2):
            k(f"buffer_load_dwordx4 {v(PB + 8 * g + 4 * i, 4)}, v{FV}, s[12:15], s10 offen offset:{2048 * i}")
        if g < 7:
            k(f"s_add_u32 s10, s10, {2 * MB}")
    k.srd(16, 4, 2 * MB)
    k.srd(20, 6, 0x4000)
    k.srd_off(24, 6, WS_X1, 6 * MB)
    k(f"""
    v_lshlrev_b32 v{XV}, 10, v{T + 1}
    v_lshl_add_u32 v{XV}, v{T + 3}, 6, v{XV}
    v_lshl_add_u32 v{XV}, v{T + 2}, 3, v{XV}
    s_lshl_b32 s10, s8, 13
    s_lshl_b32 s11, s3, 8
    s_add_u32 s10, s10, s11
    v_lshlrev_b32 v{MV}, 7, v{T + 3}
    v_lshl_add_u32 v{MV}, v{T + 2}, 4, v{MV}
    s_lshl_b32 s11, s3, 9
    s_add_u32 s11, s11, 4096
    """)
    for i in range(2):
        for h in range(2):
            k(f"buffer_load_dwordx2 {v(XR + 4 * i + 2 * h, 2)}, v{XV}, s[16:19], s10 offen offset:{128 * i + 32 * h}")
    for wh in range(3):
        for i in range(2):
            for h in range(2):
                k(f"buffer_load_dwordx4 {v(MD + 16 * wh + 8 * i + 4 * h, 4)}, v{MV}, s[20:23], s11 offen "
                  f"offset:{256 * i + 64 * h}")
        if wh < 2:
            k("s_add_u32 s11, s11, 2048")
    k(f"""
    v_bfe_u32 v{T + 4}, v{TID}, 4, 2
    v_bfe_u32 v{T + 5}, v{TID}, 2, 2
    v_and_b32 v{T + 6}, 1, v{TID}
    v_lshlrev_b32 v{T + 6}, 4, v{T + 6}
    v_mov_b32 v{T + 7}, 0x3f80
    v_lshlrev_b32 v{T + 6}, v{T + 6}, v{T + 7}
    v_cmp_eq_u32 vcc, v{T + 4}, v{T + 5}
    v_cndmask_b32 v{T + 6}, 0, v{T + 6}, vcc
    v_and_b32 v{T + 7}, 2, v{TID}
    v_cmp_eq_u32 vcc, 0, v{T + 7}
    v_cndmask_b32 v{ID + 2}, 0, v{T + 6}, vcc
    v_cndmask_b32 v{ID + 3}, v{T + 6}, 0, vcc
    v_mov_b32 v{ID}, 0
    v_mov_b32 v{ID + 1}, 0
    v_mov_b32 v{ID + 4}, 0
    v_mov_b32 v{ID + 5}, 0
    v_lshlrev_b32 v{LA}, 5, v{T + 1}
    s_lshl_b32 s11, s3, 3
    v_add_u32 v{LA + 1}, s11, v{LA}
    v_mov_b32 v{LA + 2}, {fbits(1e-5)}
    """)
    for g in range(8):
        k(f"s_waitcnt vmcnt({16 + 14 - 2 * g})")
        for i in range(2):
            for h in range(2):
                D = v(AC + 8 * i + 4 * h, 4)
                k(f"{MF} {D}, {v(ID + 2 - 2 * h, 4)}, {v(PB + 8 * g + 4 * i, 4)}, {D if g else 0}")
    k("s_waitcnt vmcnt(12)")
    stamp(k, 2)
    unpack(k, X, XR, 8)
    k("s_waitcnt vmcnt(8)")
    for e in range(16):
        k(f"v_fmac_f32 v{X + e}, v{MD + e}, v{AC + e}")

    def round_store(so):
        for i in range(8):
            k(f"v_cvt_pk_bf16_f32 v{XR + i}, v{X + 2 * i}, v{X + 2 * i + 1}")
        k(f"s_add_u32 s10, s9, {so}")
        for i in range(2):
            k(f"buffer_store_dwordx4 {v(XR + 4 * i, 4)}, v{FV}, s[24:27], s10 offen offset:{2048 * i}")

    def wave_sum(r):
        dpp_add(k, [r], "row_ror:8")
        xsum_rows(k, [r], T + 8)

    def norm(lo):
        for i in range(4):
            k(f"v_add_f32 v{T + i}, v{X + i}, v{X + 4 + i}")
        for j in (8, 12):
            for i in range(4):
                k(f"v_add_f32 v{T + i}, v{T + i}, v{X + j + i}")
        k(f"v_add_f32 v{T}, v{T}, v{T + 1}\nv_add_f32 v{T + 2}, v{T + 2}, v{T + 3}\nv_add_f32 v{T}, v{T}, v{T + 2}")
        wave_sum(T)
        k(f"v_mul_f32 v{T}, {fbits(1 / 128)}, v{T}")
        for e in range(16):
            k(f"v_sub_f32 v{X + e}, v{X + e}, v{T}")
        for i in range(4):
            k(f"v_mul_f32 v{T + 1 + i}, v{X + i}, v{X + i}")
        for j in (4, 8, 12):
            for i in range(4):
                k(f"v_fmac_f32 v{T + 1 + i}, v{X + j + i}, v{X + j + i}")
        k(f"v_add_f32 v{T + 1}, v{T + 1}, v{T + 2}\nv_add_f32 v{T + 3}, v{T + 3}, v{T + 4}\n"
          f"v_add_f32 v{T + 1}, v{T + 1}, v{T + 3}")
        wave_sum(T + 1)
        Q = AC
        k(f"""
        s_mov_b64 exec, 0xff
        ds_write_b64 v{LA + 1}, {v(T, 2)} offset:{lo}
        s_mov_b64 exec, -1
        s_waitcnt lgkmcnt(0)
        s_barrier
        ds_read_b128 {v(Q, 4)}, v{LA} offset:{lo}
        ds_read_b128 {v(Q + 4, 4)}, v{LA} offset:{lo + 16}
        s_waitcnt lgkmcnt(0)
        v_add_f32 v{T + 2}, v{Q}, v{Q + 2}
        v_add_f32 v{T + 3}, v{Q + 4}, v{Q + 6}
        v_add_f32 v{T + 4}, v{Q + 1}, v{Q + 3}
        v_add_f32 v{T + 2}, v{T + 2}, v{T + 3}
        v_add_f32 v{T + 5}, v{Q + 5}, v{Q + 7}
        v_mul_f32 v{T + 2}, 0.25, v{T + 2}
        v_add_f32 v{T + 4}, v{T + 4}, v{T + 5}
        """.replace("0.25", fbits(0.25)))
        for i in range(4):
            k(f"v_sub_f32 v{Q + 2 * i}, v{Q + 2 * i}, v{T + 2}")
        k(f"v_mul_f32 v{T + 3}, v{Q}, v{Q}")
        for i in range(1, 4):
            k(f"v_fmac_f32 v{T + 3}, v{Q + 2 * i}, v{Q + 2 * i}")
        k(f"""
        v_fmamk_f32 v{T + 4}, v{T + 3}, {fbits(128.0)}, v{T + 4}
        v_fmamk_f32 v{T + 4}, v{T + 4}, {fbits(1 / 512)}, v{LA + 2}
        v_rsq_f32 v{T + 4}, v{T + 4}
        v_sub_f32 v{T + 2}, v{T}, v{T + 2}
        v_mul_f32 v{T + 2}, v{T + 2}, v{T + 4}
        """)
        for e in range(16):
            k(f"v_fma_f32 v{X + e}, v{X + e}, v{T + 4}, v{T + 2}")

    round_store(0)
    unpack(k, X, XR, 8)
    norm(0)
    k("s_waitcnt vmcnt(2)")
    for e in range(16):
        k(f"v_fma_f32 v{X + e}, v{X + e}, v{MD + 32 + e}, v{MD + 16 + e}")
    XR = 0
    round_store(WS_H2 - WS_X1)
    unpack(k, X, XR, 8)
    norm(256)
    XR = 8
    round_store(WS_U - WS_X1)
    stamp(k, 6)
    prof_end(k, 2, 6, 3)
    k(f"s_waitcnt vmcnt(0)\n{END}:\ns_endpgm")
    return k


def gelu(k, rs, t, c0, c1):
    n = len(rs)
    for i, r in enumerate(rs):
        k(f"v_pk_mul_f32 {v(t + 2 * i, 2)}, {v(r, 2)}, {v(r, 2)}")
    for i, r in enumerate(rs):
        k(f"v_pk_fma_f32 {v(t + 2 * i, 2)}, {v(t + 2 * i, 2)}, {v(c1, 2)}, {v(c0, 2)}")
    for i, r in enumerate(rs):
        k(f"v_pk_mul_f32 {v(t + 2 * i, 2)}, {v(t + 2 * i, 2)}, {v(r, 2)}")
    for i in range(2 * n):
        k(f"v_exp_f32 v{t + i}, v{t + i}")
    for i in range(n):
        k(f"v_pk_add_f32 {v(t + 2 * i, 2)}, {v(t + 2 * i, 2)}, 1.0 op_sel_hi:[1,0]")
    for i in range(2 * n):
        k(f"v_rcp_f32 v{t + i}, v{t + i}")
    for i, r in enumerate(rs):
        k(f"v_pk_mul_f32 {v(r, 2)}, {v(t + 2 * i, 2)}, {v(r, 2)}")


def tgemm(name, kind, big, K, xoff, warg, stride):
    NW = 4 if big else 2
    KS = 1 if big else 2
    KB = K // 32
    nch = KB // KS
    R = 8
    grid = 224 if big else 256
    k = Kernel(name, grid, vgprs=256, lds=R * 16384)
    END = k.newlabel("end")
    vm = VM()
    AC = 0
    FR = 64
    EP = 128
    T = 200
    XA, WA, XV, WV, LN, GV = 224, 226, 234, 238, 239, 240
    C0, C1 = 242, 244
    k(f"s_cmp_ge_u32 s2, {grid}\ns_cbranch_scc1 {END}")
    prof_start(k)
    load_args(k, {warg: 4, "ws": 6, "out": 8})
    if PRE[0]:
        prefetch_code(k, 48, 255, 255, END, 1)
    k(f"""
    v_lshrrev_b32 v{T}, 6, v0
    v_and_b32 v{T + 1}, 63, v0
    s_and_b32 s10, s2, 7
    v_readfirstlane_b32 s3, v{T}
    s_lshr_b32 s11, s2, 3
    """)
    sh = 1 if big else 2
    k(f"""
    s_lshl_b32 s10, s10, {sh}
    s_and_b32 s12, s11, {(1 << sh) - 1}
    s_add_u32 s10, s10, s12
    s_lshr_b32 s11, s11, {sh}
    v_lshlrev_b32 v{LN}, 4, v{T + 1}
    v_lshrrev_b32 v{GV}, 4, v{T + 1}
    v_lshrrev_b32 v{T + 3}, 3, v{T + 1}
    v_and_b32 v{T + 4}, 7, v{T + 1}
    v_lshlrev_b32 v{T + 5}, 1, v{GV}
    v_xor_b32 v{T + 4}, v{T + 4}, v{T + 5}
    v_lshlrev_b32 v{T + 4}, 4, v{T + 4}
    s_lshl_b32 s12, s3, 3
    v_add_u32 v{T + 3}, s12, v{T + 3}
    s_mov_b32 s12, {stride}
    v_mul_lo_u32 v{T + 3}, v{T + 3}, s12
    s_lshl_b32 s12, s11, {8 if big else 7}
    v_add3_u32 v{WV}, v{T + 3}, v{T + 4}, s12
    s_lshl_b32 s30, s3, 11
    s_and_b32 s28, s3, 1
    s_lshr_b32 s29, s3, 1
    s_lshl_b32 s12, s10, {3 if big else 2}
    s_lshl_b32 s13, s3, {1 if big else 0}
    s_add_u32 s12, s12, s13
    """)
    if kind == "t3":
        k(f"s_lshl_b32 s12, s12, 4\nv_and_b32 v{T + 5}, 15, v{T + 1}\nv_add_u32 v{T + 5}, s12, v{T + 5}\n"
          f"v_mov_b32 v{T + 9}, 0x40000000\ns_mov_b32 s31, 0")
        for q, d in enumerate((-1, 1, -2, 2)):
            k(f"""
            v_add_u32 v{T + 6}, {d}, v{T + 5}
            v_lshrrev_b32 v{T + 7}, 4, v{T + 6}
            v_lshlrev_b32 v{T + 7}, 14, v{T + 7}
            v_lshl_add_u32 v{T + 7}, v{GV}, 8, v{T + 7}
            v_and_b32 v{T + 8}, 15, v{T + 6}
            v_lshl_add_u32 v{T + 7}, v{T + 8}, 4, v{T + 7}
            v_cmp_gt_u32 vcc, 2048, v{T + 6}
            v_cndmask_b32 v{XV + q}, v{T + 9}, v{T + 7}, vcc
            """)
    else:
        k(f"s_mul_i32 s31, s12, {KB * 1024}")
    k("s_waitcnt lgkmcnt(0)")
    k.srd(16, 4, K * stride)
    k.srd_off(20, 6, xoff, 2048 * K * 2)

    def dma_chunk(c):
        out = []
        slot = (c % R) * 16384
        xv = XV + (c >> 1) if kind == "t3" else LN
        for j in range(2):
            go = c * 1024 + j * KB * 1024 if big else (2 * c + j) * 1024
            out.append([f"s_add_u32 m0, s30, {slot + 1024 * j}", f"s_add_u32 s32, s31, {go}",
                        f"buffer_load_dwordx4 v{xv}, s[20:23], s32 offen lds"])
        for j in range(2):
            go = c * 32 * stride + 128 * j if big else (2 * c + j) * 32 * stride
            out.append([f"s_add_u32 m0, s30, {slot + 8192 + 1024 * j}", f"s_mov_b32 s32, {go}",
                        f"buffer_load_dwordx4 v{WV}, s[16:19], s32 offen lds"])
        return out

    def issue(c):
        for d in dma_chunk(c):
            for x in d:
                k(x)
            vm.add(("c", c))

    for c in range(2):
        issue(c)
    KBO = 56 if kind == "t4" else 16
    k(f"""
    s_lshl_b32 s12, s10, {3 if big else 2}
    s_lshl_b32 s13, s28, {2 if big else 1}
    s_add_u32 s34, s12, s13
    s_mul_i32 s33, s34, {KBO}
    s_lshl_b32 s12, s11, 1
    s_add_u32 s35, s12, s29
    s_lshl_b32 s12, s35, {1 if big else 0}
    s_add_u32 s33, s33, s12
    s_lshl_b32 s33, s33, 10
    """)
    k.srd(24, 6, WS_END)
    if kind in ("t3", "t5"):
        srcs = [WS_H2] if kind == "t3" else [WS_Y, WS_X1]
        for j, o in enumerate(srcs):
            for t in range(2):
                k(f"s_add_u32 s32, s33, {o + 16384 * t}")
                k(f"buffer_load_dwordx4 {v(EP + 8 * j + 4 * t, 4)}, v{LN}, s[24:27], s32 offen")
                vm.add("e")
    if kind == "t5":
        k(f"v_lshlrev_b32 v{T + 5}, 4, v{GV}\ns_lshl_b32 s32, s35, 7\ns_add_u32 s32, s32, {WS_MOD + 5 * 2048}")
        for h in range(2):
            k(f"buffer_load_dwordx4 {v(EP + 16 + 4 * h, 4)}, v{T + 5}, s[24:27], s32 offen offset:{64 * h}")
            vm.add("e")
    if kind == "t4":
        k(f"""
        v_lshlrev_b32 v{T + 5}, 4, v{GV}
        s_lshl_b32 s32, s35, 8
        s_add_u32 s32, s32, {WS_CSUM}
        """)
        for u in range(4):
            k(f"buffer_load_dwordx4 {v(EP + 32 + 4 * u, 4)}, v{T + 5}, s[24:27], s32 offen offset:{64 * u}")
            vm.add("e")
        k(f"""
        v_and_b32 v{T + 6}, 15, v{T + 1}
        v_lshlrev_b32 v{T + 6}, 7, v{T + 6}
        v_lshl_add_u32 v{T + 6}, v{GV}, 5, v{T + 6}
        s_lshl_b32 s32, s34, 11
        s_add_u32 s32, s32, {WS_STAT}
        """)
        for t in range(4):
            for h in range(2):
                k(f"buffer_load_dwordx4 {v(EP + 8 * t + 4 * h, 4)}, v{T + 6}, s[24:27], s32 offen "
                  f"offset:{2048 * (t & 1) + 16 * h}")
                vm.add("e")
            if t == 1:
                k("s_add_u32 s32, s32, 4096")
    for c in range(2, min(R, nch)):
        issue(c)
    k(f"""
    s_lshl_b32 s12, s28, 12
    v_add_u32 v{XA}, s12, v{LN}
    v_add_u32 v{XA + 1}, 0x10000, v{XA}
    v_bfe_u32 v{T + 5}, v{T + 1}, 2, 2
    v_and_b32 v{T + 6}, 1, v{GV}
    v_lshl_add_u32 v{T + 5}, v{T + 6}, 2, v{T + 5}
    v_lshrrev_b32 v{T + 6}, 1, v{GV}
    v_lshlrev_b32 v{T + 6}, 11, v{T + 6}
    v_lshl_add_u32 v{T + 6}, v{T + 5}, 7, v{T + 6}
    v_lshrrev_b32 v{T + 5}, 1, v{T + 5}
    v_lshl_add_u32 v{T + 6}, v{T + 5}, 5, v{T + 6}
    v_and_b32 v{T + 5}, 3, v{T + 1}
    v_lshl_add_u32 v{T + 6}, v{T + 5}, 3, v{T + 6}
    s_lshl_b32 s12, s29, {10 if big else 6}
    v_xor_b32 v{T + 6}, s12, v{T + 6}
    v_add_u32 v{T + 6}, 8192, v{T + 6}
    """)
    for u in range(NW):
        k(f"v_xor_b32 v{WA + 2 * u}, {32 * u}, v{T + 6}")
        k(f"v_add_u32 v{WA + 2 * u + 1}, 0x10000, v{WA + 2 * u}")
    k(f"v_mov_b32 v{C0}, {fbits(GC0)}\nv_mov_b32 v{C0 + 1}, {fbits(GC0)}\n"
      f"v_mov_b32 v{C1}, {fbits(GC1)}\nv_mov_b32 v{C1 + 1}, {fbits(GC1)}")

    def reads(c):
        hi, so, f = (c % R) >> 2, ((c % R) & 3) * 16384, FR + 32 * (c & 1)
        out = []
        for ks in range(KS):
            for t in range(NW):
                xo = t * 1024 if big else t * 2048 + ks * 1024
                out.append(f"ds_read_b128 {v(f + 4 * (NW * ks + t), 4)}, v{XA + hi} offset:{so + xo}")
            for u in range(NW):
                for rd in range(2):
                    out.append(f"ds_read_b64_tr_b16 {v(f + 16 + 4 * (NW * ks + u) + 2 * rd, 2)}, v{WA + 2 * u + hi} "
                               f"offset:{so + 4096 * rd + 1024 * ks}")
        return out

    def mfmas(c):
        f = FR + 32 * (c & 1)
        out = []
        for ks in range(KS):
            for u in range(NW):
                for t in range(NW):
                    D = v(AC + 4 * (NW * u + t), 4)
                    out.append(f"{MF} {D}, {v(f + 16 + 4 * (NW * ks + u), 4)}, {v(f + 4 * (NW * ks + t), 4)}, "
                               f"{D if c or ks else 0}")
        return out

    for c in range(nch + 1):
        fill = []
        if c < nch:
            k(vm.wait(("c", c)))
        if c:
            k("s_waitcnt lgkmcnt(0)")
        if c < nch:
            k("s_barrier")
            if c in (0, 2, nch // 2):
                stamp(k, {0: 1, 2: 2}.get(c, 3))
            rd = reads(c)
            fill = [rd[i:i + 2] for i in range(0, len(rd), 2)]
            if c and c - 1 + R < nch:
                d = dma_chunk(c - 1 + R)
                fill = fill + d if big else fill[:4] + [fill[4] + d[0] + d[1], fill[5] + d[2] + d[3]]
                for _ in d:
                    vm.add(("c", c - 1 + R))
        mm = mfmas(c - 1) if c else []
        for i in range(max(len(mm), len(fill))):
            if i < len(mm):
                k(mm[i])
            if i < len(fill):
                for x in fill[i]:
                    k(x)
    stamp(k, 4)
    k(vm.wait("e"))

    def acc(u, t):
        return AC + 4 * (NW * u + t)

    def pack(dst, p, t):
        for h in range(2):
            for i in range(2):
                k(f"v_cvt_pk_bf16_f32 v{dst + 2 * h + i}, v{acc(2 * p + h, t) + 2 * i}, v{acc(2 * p + h, t) + 2 * i + 1}")

    if kind == "t2":
        gelu(k, [AC + 2 * i for i in range(8)], FR, C0, C1)
        for t in range(2):
            pack(FR + 4 * t, 0, t)
            k(f"s_add_u32 s32, s33, {WS_T + 16384 * t}")
            k(f"buffer_store_dwordx4 {v(FR + 4 * t, 4)}, v{LN}, s[24:27], s32 offen")
    if kind == "t3":
        X = FR
        unpack(k, X, EP, 8)
        for t in range(2):
            for e in range(8):
                r = acc(e >> 2, t) + (e & 3)
                k(f"v_add_f32 v{r}, v{r}, v{X + 8 * t + e}")
        for t in range(2):
            pack(EP + 4 * t, 0, t)
            k(f"s_add_u32 s32, s33, {WS_Y + 16384 * t}")
            k(f"buffer_store_dwordx4 {v(EP + 4 * t, 4)}, v{LN}, s[24:27], s32 offen")
        unpack(k, X, EP, 8)
        for t in range(2):
            k(f"v_add_f32 v{T + 2 * t}, v{X + 8 * t}, v{X + 8 * t + 1}")
        for e in range(2, 8):
            for t in range(2):
                k(f"v_add_f32 v{T + 2 * t}, v{T + 2 * t}, v{X + 8 * t + e}")
        xsum_rows(k, [T, T + 2], T + 4)
        for t in range(2):
            k(f"v_mul_f32 v{T + 2 * t}, {fbits(1 / 32)}, v{T + 2 * t}")
        for e in range(16):
            k(f"v_sub_f32 v{X + e}, v{X + e}, v{T + 2 * (e >> 3)}")
        for t in range(2):
            k(f"v_mul_f32 v{T + 2 * t + 1}, v{X + 8 * t}, v{X + 8 * t}")
        for e in range(1, 8):
            for t in range(2):
                k(f"v_fmac_f32 v{T + 2 * t + 1}, v{X + 8 * t + e}, v{X + 8 * t + e}")
        xsum_rows(k, [T + 1, T + 3], T + 4)
        k(f"""
        v_lshlrev_b32 v{T + 6}, 3, v{LN}
        s_lshl_b32 s32, s34, 11
        s_lshl_b32 s12, s35, 3
        s_add_u32 s32, s32, s12
        s_add_u32 s32, s32, {WS_STAT}
        s_mov_b64 exec, 0xffff
        buffer_store_dwordx2 {v(T, 2)}, v{T + 6}, s[24:27], s32 offen
        buffer_store_dwordx2 {v(T + 2, 2)}, v{T + 6}, s[24:27], s32 offen offset:2048
        """)
    if kind == "t4":
        MEAN, M2 = FR, FR + 4
        for t in range(4):
            k(f"v_add_f32 v{MEAN + t}, v{EP + 8 * t}, v{EP + 8 * t + 2}")
            k(f"v_add_f32 v{M2 + t}, v{EP + 8 * t + 1}, v{EP + 8 * t + 3}")
        for j in (4, 6):
            for t in range(4):
                k(f"v_add_f32 v{MEAN + t}, v{MEAN + t}, v{EP + 8 * t + j}")
                k(f"v_add_f32 v{M2 + t}, v{M2 + t}, v{EP + 8 * t + j + 1}")
        xsum_rows(k, [MEAN + t for t in range(4)], FR + 8)
        for t in range(4):
            k(f"v_mul_f32 v{MEAN + t}, {fbits(1 / 16)}, v{MEAN + t}")
        for j in range(0, 8, 2):
            for t in range(4):
                k(f"v_sub_f32 v{EP + 8 * t + j}, v{EP + 8 * t + j}, v{MEAN + t}")
        for j in range(0, 8, 2):
            for t in range(4):
                k(f"v_mul_f32 v{EP + 8 * t + j + 1}, {fbits(32.0)}, v{EP + 8 * t + j}")
            for t in range(4):
                k(f"v_fmac_f32 v{M2 + t}, v{EP + 8 * t + j}, v{EP + 8 * t + j + 1}")
        xsum_rows(k, [M2 + t for t in range(4)], FR + 8)
        RS, NM = EP, EP + 8
        k(f"v_mov_b32 v{T}, {fbits(1e-5)}")
        for t in range(4):
            k(f"v_fmamk_f32 v{M2 + t}, v{M2 + t}, {fbits(1 / 512)}, v{T}")
        for t in range(4):
            k(f"v_rsq_f32 v{RS + 2 * t}, v{M2 + t}")
        for t in range(4):
            k(f"v_sub_f32 v{NM + 2 * t}, 0, v{MEAN + t}")
            k(f"v_mov_b32 v{RS + 2 * t + 1}, v{RS + 2 * t}")
            k(f"v_sub_f32 v{NM + 2 * t + 1}, 0, v{MEAN + t}")
        for t in range(4):
            rs = [acc(u, t) + 2 * i for u in range(4) for i in range(2)]
            for j, r in enumerate(rs):
                k(f"v_pk_fma_f32 {v(r, 2)}, {v(EP + 32 + 2 * j, 2)}, {v(NM + 2 * t, 2)}, {v(r, 2)}")
            for r in rs:
                k(f"v_pk_mul_f32 {v(r, 2)}, {v(r, 2)}, {v(RS + 2 * t, 2)}")
            gelu(k, rs, FR, C0, C1)
            k(f"s_add_u32 s32, s33, {WS_G + 56 * 1024 * t}")
            for p in range(2):
                d = FR + 16 + 8 * t + 4 * p
                pack(d, p, t)
                k(f"buffer_store_dwordx4 {v(d, 4)}, v{LN}, s[24:27], s32 offen offset:{1024 * p}")
    if kind == "t5":
        Y, X = FR, FR + 16
        unpack(k, Y, EP, 8)
        unpack(k, X, EP + 8, 8)
        k.srd(20, 8, 2 * MB)
        for t in range(2):
            for e in range(8):
                r = acc(e >> 2, t) + (e & 3)
                k(f"v_add_f32 v{r}, v{r}, v{Y + 8 * t + e}")
        for t in range(2):
            for e in range(8):
                r = acc(e >> 2, t) + (e & 3)
                k(f"v_fma_f32 v{r}, v{r}, v{EP + 16 + e}, v{X + 8 * t + e}")
        for t in range(2):
            pack(EP + 4 * t, 0, t)
        for swap in ("v_permlane32_swap_b32", "v_permlane16_swap_b32"):
            for t in range(2):
                k(f"{swap} v{EP + 4 * t}, v{EP + 4 * t + 2}")
                k(f"{swap} v{EP + 4 * t + 1}, v{EP + 4 * t + 3}")
        k(f"""
        v_and_b32 v{T + 6}, 15, v{T + 1}
        v_lshlrev_b32 v{T + 6}, 10, v{T + 6}
        v_lshl_add_u32 v{T + 6}, v{GV}, 4, v{T + 6}
        s_lshl_b32 s32, s34, 14
        s_lshl_b32 s12, s35, 6
        s_add_u32 s32, s32, s12
        buffer_store_dwordx4 {v(EP, 4)}, v{T + 6}, s[20:23], s32 offen
        s_add_u32 s32, s32, 16384
        buffer_store_dwordx4 {v(EP + 4, 4)}, v{T + 6}, s[20:23], s32 offen
        """)
    stamp(k, 6)
    prof_end(k, int(kind[1]) + 1, 6, 3)
    k(f"s_waitcnt vmcnt(0)\n{END}:\ns_endpgm")
    return k


def tails():
    return [t1(),
            tgemm("t2_kernel", "t2", False, 512, WS_U, "w1", 1024),
            tgemm("t3_kernel", "t3", False, 512, WS_T, "w2", 1024),
            tgemm("t4_kernel", "t4", True, 512, WS_Y, "w3", 3584),
            tgemm("t5_kernel", "t5", False, 1792, WS_G, "w4", 1024)]
```

```python
import sys
from common import *
from k1 import k1
from k2 import k2
from tail import tails

PROF[0] = "prof" in sys.argv[2:]
PRE[0] = "all" if "all" in sys.argv[2:] else "" if "nopre" in sys.argv[2:] else "own"
for x in sys.argv[2:]:
    if x.startswith("warm="):
        WARM[0] = x[5:]
ks = [k1(), k2()] + tails()
out = sys.argv[1] if len(sys.argv) > 1 else "full.s"
open(out, "w").write(build(ks))
```
